```python
import torch

def _softmax(x, axis=-1):
    return torch.softmax(x, dim=axis)
def _gelu(x):
    return torch.nn.functional.gelu(x, approximate="tanh")
def _silu(x):
    return torch.nn.functional.silu(x)
def _sigmoid(x):
    return torch.sigmoid(x)
def _layernorm(x, axis=-1, eps=1e-5):
    m = x.mean(dim=axis, keepdim=True)
    v = x.var(dim=axis, keepdim=True, unbiased=False)
    return (x - m) / torch.sqrt(v + eps)
def _scatter_add(tgt, idx, src, axis=0):
    return tgt.clone().index_add_(axis, idx, src)
def _segment_sum(src, seg, n):
    out = torch.zeros((n,) + src.shape[1:], dtype=src.dtype)
    return out.index_add_(0, seg, src)
def _pad(x, pw):
    flat = tuple(v for pair in reversed(pw) for v in pair)
    return torch.nn.functional.pad(x, flat)

kernel_name = 'interleave_layers__ssm_conv_s4d__glu_gated_swiglu__prompt'

def setup_inputs():

    _w = (lambda a: (lambda t: t.to(torch.bfloat16) if t.is_floating_point() else t)(torch.as_tensor(a)))
    def _A_setup():
        Bsz, L, D, N = 1, 2048, 512, 128
        return {
            "u": _w((lambda *s: torch.randn(*s, dtype=torch.bfloat16) * 0.05)(Bsz, L, D)),
            "log_A_real": _w((lambda *s: torch.randn(*s, dtype=torch.bfloat16) * 3.2)(D, N) * 0.5),
            "A_imag": _w((lambda *s: torch.randn(*s, dtype=torch.bfloat16) * 0.05)(D, N) * 3.14),
            "C_real": _w((lambda *s: torch.randn(*s, dtype=torch.bfloat16) * 0.05)(D, N) / N ** 0.5),
            "C_imag": _w((lambda *s: torch.randn(*s, dtype=torch.bfloat16) * 0.05)(D, N) / N ** 0.5),
            "log_dt": _w((lambda *s: torch.randn(*s, dtype=torch.bfloat16) * 0.05)(D) * 0.5 - 4.0),
            "D_skip": _w((lambda *s: torch.randn(*s, dtype=torch.bfloat16) * 0.05)(D)),
        }
    _A_in = _A_setup()

    def _B_setup():
        B, S, D, F = 1, 2048, 512, 1376
        return {
            "x": _w((lambda *s: torch.randn(*s, dtype=torch.bfloat16) * 0.05)(B, S, D)),
            "w1": _w((lambda *s: torch.randn(*s, dtype=torch.bfloat16) * 0.4)(D, F) * (2.0 / D) ** 0.5),
            "w3": _w((lambda *s: torch.randn(*s, dtype=torch.bfloat16) * 0.4)(D, F) * (2.0 / D) ** 0.5),
            "w2": _w((lambda *s: torch.randn(*s, dtype=torch.bfloat16) * 0.4)(F, D) * (2.0 / F) ** 0.5),
        }
    _B_in = _B_setup()

    return {
        "A_u": _A_in["u"],
        "A_log_A_real": _A_in["log_A_real"],
        "A_A_imag": _A_in["A_imag"],
        "A_C_real": _A_in["C_real"],
        "A_C_imag": _A_in["C_imag"],
        "A_log_dt": _A_in["log_dt"],
        "A_D_skip": _A_in["D_skip"],
        "B_x": _B_in["x"],
        "B_w1": _B_in["w1"],
        "B_w3": _B_in["w3"],
        "B_w2": _B_in["w2"],
    }

def reference(A_u, A_log_A_real, A_A_imag, A_C_real, A_C_imag, A_log_dt, A_D_skip, B_x, B_w1, B_w3, B_w2):
    def _A_ref(u, log_A_real, A_imag, C_real, C_imag, log_dt, D_skip):
        L = u.shape[1]
        dt = torch.exp(log_dt)
        A = -torch.exp(log_A_real) + 1j * A_imag
        C = (C_real + 1j * C_imag) * dt[:, None]
        pos = (lambda x, dt: x.to(dt))(torch.arange(L), log_dt.dtype)
        P = torch.exp((A * dt[:, None])[:, :, None] * pos[None, None, :])
        K = 2.0 * torch.einsum("dn,dnl->dl", C, P).real
        L2 = 2 * L
        u_t = (lambda x, *d: x.permute(*d))(u, 0, 2, 1)
        Kf = (lambda x, *a, **k: torch.fft.rfft(x.float(), *a, **k))(K, L2)
        Uf = (lambda x, *a, **k: torch.fft.rfft(x.float(), *a, **k))(u_t, L2)
        y = (lambda x, *a, **k: torch.fft.irfft(x, *a, **k).to(torch.bfloat16))(Uf * Kf[None, :, :], L2)[:, :, :L]
        y = (lambda x, *d: x.permute(*d))(y, 0, 2, 1)
        return y + u * D_skip[None, None, :]

    def _B_ref(x, w1, w3, w2):
        gate = torch.einsum("bsd,df->bsf", x, w1)
        up = torch.einsum("bsd,df->bsf", x, w3)
        h = _silu(gate) * up
        out = torch.einsum("bsf,fd->bsd", h, w2)
        return out

    x = A_u
    x = x + _A_ref(_layernorm(x, axis=-1), A_log_A_real, A_A_imag, A_C_real, A_C_imag, A_log_dt, A_D_skip)
    x = x + _B_ref(_layernorm(x, axis=-1), B_w1, B_w3, B_w2)
    x = x + _A_ref(_layernorm(x, axis=-1), A_log_A_real, A_A_imag, A_C_real, A_C_imag, A_log_dt, A_D_skip)
    x = x + _B_ref(_layernorm(x, axis=-1), B_w1, B_w3, B_w2)
    return x
```

```python
class Asm:
    def __init__(self):
        self.lines = []
        self._lab = 0
    def __call__(self, s):
        for ln in s.strip("\n").split("\n"):
            ln = ln.strip()
            if not ln: continue
            if ln.endswith(":"):
                self.lines.append(ln)
            else:
                self.lines.append("    " + ln)
    def raw(self, s):
        self.lines.append(s)
    def newlabel(self, p="L"):
        self._lab += 1
        return f"{p}_{self._lab}"
    def text(self):
        return "\n".join(self.lines) + "\n"

NAME = "interleave_layers__ssm_conv_s4d__glu_gated_swiglu__prompt"

MB = 1 << 20
WS_XT0 = 0
WS_XT1 = 2 * MB
WS_XT2 = 4 * MB
WS_XT3 = 6 * MB
WS_H   = 8 * MB
WS_KT  = 16 * MB
WS_ST  = 24 * MB
KT_PITCH = 9216
H_PITCH = 1408 * 2

def kernel_header(a, name):
    a.raw(f".globl {name}")
    a.raw(".p2align 8")
    a.raw(f".type {name},@function")
    a.raw(f"{name}:")

def kernel_desc(a, name, vgpr, sgpr=102, accum=None):
    vg = (vgpr + 7) // 8 * 8
    acc = accum if accum is not None else (vgpr + 3) // 4 * 4
    a.raw(".section .rodata,\"a\"")
    a.raw(".p2align 6")
    a.raw(f".amdhsa_kernel {name}")
    a.raw(f"  .amdhsa_next_free_vgpr {vgpr}")
    a.raw(f"  .amdhsa_next_free_sgpr {sgpr}")
    a.raw(f"  .amdhsa_accum_offset {acc}")
    a.raw("  .amdhsa_group_segment_fixed_size 0")
    a.raw("  .amdhsa_kernarg_size 112")
    a.raw("  .amdhsa_user_sgpr_count 2")
    a.raw("  .amdhsa_user_sgpr_kernarg_segment_ptr 1")
    a.raw("  .amdhsa_system_sgpr_workgroup_id_x 1")
    a.raw(".end_amdhsa_kernel")
    a.raw(".text")

def srd(a, R, ptr, off, size):
    if off:
        a(f"s_add_u32 s{R}, s{ptr}, {hex(off)}")
        a(f"s_addc_u32 s{R+1}, s{ptr+1}, 0")
    else:
        a(f"s_mov_b32 s{R}, s{ptr}")
        a(f"s_mov_b32 s{R+1}, s{ptr+1}")
    a(f"s_mov_b32 s{R+2}, {hex(size)}")
    a(f"s_mov_b32 s{R+3}, 0x00020000")
```

```python
from gen_common import *

def gen_conv(a, name, xin, xout, layer):
    kernel_header(a, name)
    E = name + "_end"
    a(f"""
    s_cmp_ge_u32 s2, 512
    s_cbranch_scc1 {E}
    s_load_dwordx2 s[4:5], s[0:1], 48
    s_load_dwordx2 s[6:7], s[0:1], 104
    s_and_b32 s24, s2, 0x1fe
    s_lshl_b32 s24, s24, 1
    s_waitcnt lgkmcnt(0)
    s_load_dword s25, s[4:5], s24
    """)
    srd(a, 8, 6, xin, 2 * MB)
    srd(a, 12, 6, xout, 2 * MB)
    srd(a, 16, 6, WS_KT, 512 * KT_PITCH)
    srd(a, 20, 6, WS_ST + layer * 16384, 16384)
    UR, KH, KL, RED = 0, 4608, 9216, 13824
    a(f"""
    s_lshl_b32 s26, s2, 12            ; d*4096
    v_lshl_add_u32 v1, v0, 4, s26
    buffer_load_dwordx4 v[4:7], v1, s[8:11], 0 offen
    v_lshlrev_b32 v2, 6, v0
    buffer_load_dwordx4 v[32:35], v2, s[20:23], 0 offen
    buffer_load_dwordx4 v[36:39], v2, s[20:23], 0 offen offset:16
    buffer_load_dwordx4 v[40:43], v2, s[20:23], 0 offen offset:32
    buffer_load_dwordx4 v[44:47], v2, s[20:23], 0 offen offset:48
    s_mul_i32 s27, s2, 9216
    v_lshl_add_u32 v2, v0, 4, s27
    buffer_load_dwordx4 v[48:51], v2, s[16:19], 0 offen
    v_add_u32 v3, 0x1000, v2
    buffer_load_dwordx4 v[52:55], v3, s[16:19], 0 offen
    v_add_u32 v3, 0x2000, v2
    v_cmp_gt_u32 vcc, 64, v0
    s_and_saveexec_b64 s[28:29], vcc
    buffer_load_dwordx4 v[56:59], v3, s[16:19], 0 offen
    s_mov_b64 exec, s[28:29]
    v_mov_b32 v60, 0
    v_mov_b32 v61, 0
    v_mov_b32 v62, 0
    v_mov_b32 v63, 0
    v_lshlrev_b32 v3, 4, v0
    v_cmp_gt_u32 vcc, 18, v0
    s_and_saveexec_b64 s[28:29], vcc
    ds_write_b128 v3, v[60:63] offset:4096
    s_mov_b64 exec, s[28:29]
    s_mov_b32 s30, 0x3b000000         ; 1/512
    s_mov_b32 s31, 0x3727c5ac         ; 1e-5
    s_waitcnt vmcnt(3)
    """)
    for k in range(4):
        a(f"v_lshlrev_b32 v{8+2*k}, 16, v{4+k}")
        a(f"v_and_b32 v{9+2*k}, 0xffff0000, v{4+k}")
    for e in range(8):
        S, Q = 32 + 2*e, 33 + 2*e
        a(f"v_mul_f32 v{S}, s30, v{S}")
        a(f"v_mul_f32 v{Q}, s30, v{Q}")
        a(f"v_fma_f32 v{Q}, -v{S}, v{S}, v{Q}")
        a(f"v_max_f32 v{Q}, 0, v{Q}")
        a(f"v_cvt_pk_bf16_f32 v{S}, v{S}, v{Q}")
        a(f"v_and_b32 v{Q}, 0xffff0000, v{S}")
        a(f"v_lshlrev_b32 v{S}, 16, v{S}")
        a(f"v_add_f32 v{Q}, s31, v{Q}")
        a(f"v_sub_f32 v{16+e}, v{8+e}, v{S}")
        a(f"v_cvt_pk_bf16_f32 v{Q}, v{Q}, v{16+e}")
        a(f"v_and_b32 v{16+e}, 0xffff0000, v{Q}")
        a(f"v_lshlrev_b32 v{Q}, 16, v{Q}")
        a(f"v_sqrt_f32 v{Q}, v{Q}")
        a("s_nop 0")
        a(f"v_cvt_pk_bf16_f32 v{Q}, v{Q}, v{Q}")
        a(f"v_lshlrev_b32 v{Q}, 16, v{Q}")
        a(f"v_rcp_f32 v{S}, v{Q}")
        a("s_nop 0")
        a(f"v_mul_f32 v60, v{16+e}, v{S}")
        a(f"v_fma_f32 v61, -v60, v{Q}, v{16+e}")
        a(f"v_fma_f32 v{16+e}, v61, v{S}, v60")
    for k in range(4):
        a(f"v_cvt_pk_bf16_f32 v{24+k}, v{16+2*k}, v{17+2*k}")
    for k in range(4):
        a(f"v_lshlrev_b32 v{16+2*k}, 16, v{24+k}")
        a(f"v_and_b32 v{17+2*k}, 0xffff0000, v{24+k}")
    for k in range(4):
        a(f"v_alignbit_b32 v{28+k}, v{27-k}, v{27-k}, 16")
    a(f"""
    v_lshlrev_b32 v3, 4, v0
    v_sub_u32 v2, 4080, v3
    ds_write_b128 v2, v[28:31]
    s_waitcnt vmcnt(0)
    ds_write_b128 v3, v[48:51] offset:{KH}
    ds_write_b128 v3, v[52:55] offset:{KH+4096}
    v_cmp_gt_u32 vcc, 64, v0
    s_and_saveexec_b64 s[28:29], vcc
    ds_write_b128 v3, v[56:59] offset:{KH+8192}
    s_mov_b64 exec, s[28:29]
    v_and_b32 v1, 15, v0              ; i / c
    v_bfe_u32 v2, v0, 4, 2            ; kq
    v_lshrrev_b32 v3, 6, v0           ; w
    v_add_u32 v4, v1, v2
    v_lshlrev_b32 v4, 4, v4
    v_lshl_add_u32 v4, v3, 7, v4      ; 16(i+kq) + 128w
    v_and_b32 v5, 7, v1               ; r
    v_lshrrev_b32 v6, 3, v1           ; a1
    v_lshlrev_b32 v7, 8, v6
    v_lshl_add_u32 v7, v5, 1, v7      ; 256a1 + 2r
    v_sub_u32 v5, {3854-3584}, v7
    v_lshl_add_u32 v5, v3, 7, v5
    v_lshl_add_u32 v5, v2, 4, v5
    s_waitcnt lgkmcnt(0)
    s_barrier
    """)
    def loads(base, ph):
        AH, AL, B = base, base + 32, base + 64
        for s in range(8):
            a(f"ds_read_b128 v[{B+4*s}:{B+4*s+3}], v5 offset:{512*(7-s) + 64*ph}")
            a(f"ds_read_b128 v[{AH+4*s}:{AH+4*s+3}], v4 offset:{KH + 512*s + 64*ph}")
            a(f"ds_read_b128 v[{AL+4*s}:{AL+4*s+3}], v4 offset:{KL + 512*s + 64*ph}")
    ACC = 224
    for r in range(32):
        a(f"v_mov_b32 v{ACC+r}, 0")
    loads(32, 0)
    a("s_waitcnt lgkmcnt(0)")
    loads(128, 1)
    def mfmas(base):
        AH, AL, B = base, base + 32, base + 64
        for al in range(8):
            for be in range(8 - al):
                q = al + be
                a(f"v_mfma_f32_16x16x32_bf16 v[{ACC+4*q}:{ACC+4*q+3}], v[{AH+4*al}:{AH+4*al+3}], v[{B+4*be}:{B+4*be+3}], v[{ACC+4*q}:{ACC+4*q+3}]")
                a(f"v_mfma_f32_16x16x32_bf16 v[{ACC+4*q}:{ACC+4*q+3}], v[{AL+4*al}:{AL+4*al+3}], v[{B+4*be}:{B+4*be+3}], v[{ACC+4*q}:{ACC+4*q+3}]")
    mfmas(32)
    a("s_waitcnt lgkmcnt(0)")
    mfmas(128)
    a("s_nop 15")
    a(f"""
    v_and_b32 v1, 15, v0
    v_bfe_u32 v2, v0, 4, 2            ; g
    v_lshrrev_b32 v3, 6, v0           ; w
    v_and_b32 v5, 7, v1               ; r
    v_lshrrev_b32 v6, 3, v1           ; a1
    v_and_b32 v7, 1, v2
    v_lshlrev_b32 v7, 3, v7
    v_lshl_add_u32 v7, v6, 4, v7
    v_lshl_add_u32 v5, v6, 7, v5      ; 128a1 + r
    v_lshl_add_u32 v5, v2, 5, v5      ; + 32g
    v_lshl_add_u32 v5, v3, 11, v5     ; + 2048w
    """)
    for j in range(4):
        a(f"v_xor_b32 v{32+j}, {8*j}, v7")
        a(f"v_add_lshl_u32 v{32+j}, v{32+j}, v5, 2")
    for q in range(8):
        for j in range(4):
            a(f"ds_write_b32 v{32+j}, v{ACC+4*q+j} offset:{RED + 1024*q}")
    a(f"""
    v_bfe_u32 v1, v0, 2, 1
    v_bfe_u32 v2, v0, 4, 1
    v_lshlrev_b32 v1, 3, v1
    v_lshl_add_u32 v1, v2, 4, v1
    v_lshlrev_b32 v2, 3, v0
    v_xor_b32 v1, v1, v2
    v_lshlrev_b32 v1, 2, v1
    s_waitcnt lgkmcnt(0)
    s_barrier
    """)
    for w in range(4):
        a(f"ds_read_b128 v[{32+8*w}:{35+8*w}], v1 offset:{RED + 8192*w}")
        a(f"ds_read_b128 v[{36+8*w}:{39+8*w}], v1 offset:{RED + 8192*w + 16}")
    a("""
    s_and_b32 s24, s2, 1
    s_lshl_b32 s24, s24, 4
    s_lshr_b32 s25, s25, s24
    s_lshl_b32 s25, s25, 16
    s_waitcnt lgkmcnt(0)
    """)
    for e in range(8):
        a(f"v_add_f32 v{32+e}, v{32+e}, v{40+e}")
        a(f"v_add_f32 v{48+e}, v{48+e}, v{56+e}")
        a(f"v_add_f32 v{32+e}, v{32+e}, v{48+e}")
        a(f"v_mul_f32 v{40+e}, s25, v{16+e}")
        a(f"v_cvt_pk_bf16_f32 v{32+e}, v{32+e}, v{40+e}")
        a(f"v_and_b32 v{40+e}, 0xffff0000, v{32+e}")
        a(f"v_lshlrev_b32 v{32+e}, 16, v{32+e}")
        a(f"v_add_f32 v{32+e}, v{32+e}, v{40+e}")
        a(f"v_cvt_pk_bf16_f32 v{32+e}, v{32+e}, v{32+e}")
        a(f"v_lshlrev_b32 v{32+e}, 16, v{32+e}")
        a(f"v_add_f32 v{32+e}, v{32+e}, v{8+e}")
    for k in range(4):
        a(f"v_cvt_pk_bf16_f32 v{40+k}, v{32+2*k}, v{33+2*k}")
    a("""
    v_lshl_add_u32 v1, v0, 4, s26
    buffer_store_dwordx4 v[40:43], v1, s[12:15], 0 offen
    """)
    a(f"{E}:")
    a("s_endpgm")
    kernel_desc(a, name, 256)
```

```python
from gen_common import *
DEBUG = False

def gen_gemm1(a, name, xin):
    kernel_header(a, name)
    E = name + "_end"
    WST = 65536
    WSZ = 22784
    UPOFF = 11392
    SCR = WST + 3 * WSZ
    FIN = SCR + 8192
    a(f"""
    s_cmp_ge_u32 s2, 256
    s_cbranch_scc1 {E}
    s_load_dwordx4 s[4:7], s[0:1], 64
    s_load_dwordx2 s[8:9], s[0:1], 104
    s_and_b32 s28, s2, 7              ; ft
    s_lshr_b32 s29, s2, 3             ; mt
    s_waitcnt lgkmcnt(0)
    """)
    srd(a, 12, 4, 0, 512 * 1376 * 2)
    srd(a, 16, 6, 0, 512 * 1376 * 2)
    srd(a, 20, 8, xin, 2 * MB)
    srd(a, 24, 8, WS_H, 2048 * H_PITCH)
    a(f"""
    v_lshrrev_b32 v1, 6, v0
    s_nop 1
    v_readfirstlane_b32 s30, v1
    s_nop 3
    ; W DMA lane offsets: k = tid/22, cc = tid%22
    v_mul_u32_u24 v2, 2979, v0
    v_lshrrev_b32 v2, 16, v2          ; k
    v_mul_u32_u24 v3, 22, v2
    v_sub_u32 v3, v0, v3              ; cc
    v_mul_u32_u24 v2, 2752, v2
    v_lshl_add_u32 v2, v3, 4, v2      ; k*2752 + cc*16
    s_mul_i32 s31, s28, 352           ; f0*2
    v_add_u32 v2, s31, v2
    s_lshl_b32 s32, s30, 10           ; wave*1024
    """)
    def dma(stage):
        buf = stage % 3
        a(f"s_add_u32 s33, s32, {WST + buf*WSZ}")
        a(f"s_mov_b32 m0, s33")
        a(f"s_mov_b32 s34, {stage * 88064}")
        a(f"buffer_load_dwordx4 v2, s[12:15], s34 offen lds")
        a(f"s_add_u32 s33, s33, {UPOFF}")
        a(f"s_mov_b32 m0, s33")
        a(f"s_nop 0")
        a(f"buffer_load_dwordx4 v2, s[16:19], s34 offen lds")
    dma(0)
    dma(1)
    a(f"""
    s_cmp_ge_u32 s30, 8
    s_cbranch_scc1 {name}_ln_skip1
    v_and_b32 v4, 7, v0               ; c
    v_lshrrev_b32 v5, 3, v0           ; g (0..63)
    s_lshl_b32 s35, s29, 7            ; t0*2
    v_lshlrev_b32 v6, 12, v5          ; g*4096
    v_lshl_add_u32 v6, v4, 4, v6
    v_add_u32 v6, s35, v6
    """)
    for e in range(8):
        a(f"buffer_load_dwordx4 v[{32+4*e}:{35+4*e}], v6, s[20:23], 0 offen")
        if e < 7:
            a(f"v_add_u32 v6, 0x40000, v6")
    for k in range(16):
        a(f"v_mov_b32 v{64+k}, 0")
    for e in range(8):
        a(f"s_waitcnt vmcnt({7-e})")
        for k in range(4):
            a(f"v_lshlrev_b32 v8, 16, v{32+4*e+k}")
            a(f"v_and_b32 v9, 0xffff0000, v{32+4*e+k}")
            a(f"v_add_f32 v{64+2*k}, v{64+2*k}, v8")
            a(f"v_fma_f32 v{72+2*k}, v8, v8, v{72+2*k}")
            a(f"v_add_f32 v{65+2*k}, v{65+2*k}, v9")
            a(f"v_fma_f32 v{73+2*k}, v9, v9, v{73+2*k}")
    for off in (0x201F, 0x401F):
        for k in range(16):
            a(f"ds_swizzle_b32 v{80+k}, v{64+k} offset:{hex(off)}")
        a("s_waitcnt lgkmcnt(0)")
        for k in range(16):
            a(f"v_add_f32 v{64+k}, v{64+k}, v{80+k}")
    a(f"""
    v_lshrrev_b32 v8, 5, v0
    v_lshlrev_b32 v8, 9, v8
    v_lshl_add_u32 v8, v4, 6, v8
    v_add_u32 v8, {SCR}, v8
    v_and_b32 v9, 31, v0
    v_cmp_gt_u32 vcc, 8, v9
    s_and_saveexec_b64 s[36:37], vcc
    ds_write_b128 v8, v[64:67] offset:0
    ds_write_b128 v8, v[68:71] offset:16
    ds_write_b128 v8, v[72:75] offset:32
    ds_write_b128 v8, v[76:79] offset:48
    s_mov_b64 exec, s[36:37]
    s_waitcnt lgkmcnt(0)
{name}_ln_skip1:
    s_barrier
    ; final stats by wave 0: thread t (0..63): c = t/8, e = t%8 : addr = c*64 + e*4 (+32 for sq)
    s_cmp_lg_u32 s30, 0
    s_cbranch_scc1 {name}_ln_skip2
    v_lshrrev_b32 v8, 3, v0
    v_lshlrev_b32 v8, 6, v8
    v_and_b32 v9, 7, v0
    v_lshl_add_u32 v8, v9, 2, v8
    v_add_u32 v8, {SCR}, v8
    """)
    for p in range(16):
        a(f"ds_read_b32 v{96+p}, v8 offset:{512*p}")
        a(f"ds_read_b32 v{112+p}, v8 offset:{512*p + 32}")
    a("s_waitcnt lgkmcnt(0)")
    for st in (8, 4, 2, 1):
        for k in range(st):
            a(f"v_add_f32 v{96+k}, v{96+k}, v{96+k+st}")
            a(f"v_add_f32 v{112+k}, v{112+k}, v{112+k+st}")
    a(f"""
    s_mov_b32 s36, 0x3b000000
    s_mov_b32 s37, 0x3727c5ac
    v_mul_f32 v96, s36, v96
    v_mul_f32 v112, s36, v112
    v_fma_f32 v112, -v96, v96, v112
    v_max_f32 v112, 0, v112
    v_cvt_pk_bf16_f32 v96, v96, v112
    v_and_b32 v112, 0xffff0000, v96
    v_lshlrev_b32 v96, 16, v96
    v_add_f32 v112, s37, v112
    v_cvt_pk_bf16_f32 v112, v112, v112
    v_lshlrev_b32 v112, 16, v112
    v_sqrt_f32 v112, v112
    s_nop 0
    v_cvt_pk_bf16_f32 v112, v112, v112
    v_lshlrev_b32 v112, 16, v112
    v_lshlrev_b32 v8, 2, v0
    v_add_u32 v8, {FIN}, v8
    ds_write_b32 v8, v96 offset:0
    ds_write_b32 v8, v112 offset:256
    s_waitcnt lgkmcnt(0)
{name}_ln_skip2:
    s_barrier
    s_cmp_ge_u32 s30, 8
    s_cbranch_scc1 {name}_ln_skip3
    v_lshlrev_b32 v8, 5, v4
    v_add_u32 v8, {FIN}, v8
    ds_read_b128 v[64:67], v8 offset:0
    ds_read_b128 v[68:71], v8 offset:16
    ds_read_b128 v[72:75], v8 offset:256
    ds_read_b128 v[76:79], v8 offset:272
    s_waitcnt lgkmcnt(0)
    """)
    for k in range(8):
        a(f"v_rcp_f32 v{80+k}, v{72+k}")
    a(f"""
    v_bfe_u32 v8, v5, 1, 1
    v_lshrrev_b32 v9, 2, v4
    v_xor_b32 v8, v8, v9
    v_lshlrev_b32 v8, 6, v8
    v_and_b32 v9, 3, v4
    v_lshl_add_u32 v8, v9, 4, v8
    v_lshl_add_u32 v8, v5, 7, v8
    """)
    for e in range(8):
        for k in range(4):
            R = 32 + 4*e + k
            a(f"v_lshlrev_b32 v10, 16, v{R}")
            a(f"v_and_b32 v11, 0xffff0000, v{R}")
            a(f"v_sub_f32 v10, v10, v{64+2*k}")
            a(f"v_sub_f32 v11, v11, v{65+2*k}")
            a(f"v_cvt_pk_bf16_f32 v12, v10, v11")
            a(f"v_lshlrev_b32 v10, 16, v12")
            a(f"v_and_b32 v11, 0xffff0000, v12")
            a(f"v_mul_f32 v12, v10, v{80+2*k}")
            a(f"v_mul_f32 v13, v11, v{81+2*k}")
            a(f"v_fma_f32 v14, -v12, v{72+2*k}, v10")
            a(f"v_fma_f32 v15, -v13, v{73+2*k}, v11")
            a(f"v_fma_f32 v12, v14, v{80+2*k}, v12")
            a(f"v_fma_f32 v13, v15, v{81+2*k}, v13")
            a(f"v_cvt_pk_bf16_f32 v{R}, v12, v13")
        a(f"ds_write_b128 v8, v[{32+4*e}:{35+4*e}] offset:{8192*e}")
    a(f"""
    s_waitcnt lgkmcnt(0)
{name}_ln_skip3:
    v_and_b32 v8, 63, v0              ; l
    v_bfe_u32 v9, v8, 4, 1            ; part / g%2
    v_lshrrev_b32 v10, 5, v8          ; kg
    v_bfe_u32 v11, v8, 2, 2           ; rr
    v_and_b32 v12, 3, v8              ; c4
    v_lshl_add_u32 v13, v10, 3, v11
    v_mul_u32_u24 v14, 352, v13
    v_mul_u32_u24 v15, {UPOFF}, v9
    v_add_u32 v14, v14, v15
    v_lshl_add_u32 v14, v12, 3, v14
    s_lshl_b32 s35, s30, 5
    v_add_u32 v4, s35, v14            ; vA
    v_add_u32 v4, {WST}, v4
    v_lshlrev_b32 v14, 7, v13
    v_lshl_add_u32 v14, v9, 5, v14
    v_lshl_add_u32 v14, v12, 3, v14
    v_lshrrev_b32 v15, 1, v11         ; rr>>1
    v_lshl_add_u32 v5, v15, 6, v14    ; vB0
    v_xor_b32 v15, 1, v15
    v_lshl_add_u32 v6, v15, 6, v14    ; vB1
    """)
    ACC = 96
    for r in range(32):
        a(f"v_mov_b32 v{ACC+r}, 0")
    for st in range(16):
        buf = st % 3
        nout = 2 if st < 15 else 0
        a(f"s_waitcnt vmcnt({nout})")
        a("s_barrier")
        if st == 0 and DEBUG:
            lab = a.newlabel(name + "_dbg")
            a("s_cmp_lg_u32 s2, 0")
            a(f"s_cbranch_scc1 {lab}")
            srd(a, 40, 8, 32 * MB, 1 << 20)
            a("v_lshlrev_b32 v20, 4, v0")
            for it in range(13):
                a(f"ds_read_b128 v[24:27], v20")
                a("s_waitcnt lgkmcnt(0)")
                a("buffer_store_dwordx4 v[24:27], v20, s[40:43], 0 offen")
                a("s_waitcnt vmcnt(0)")
                a(f"v_add_u32 v20, {704*16}, v20")
            a(f"{lab}:")
        if st + 2 < 16:
            dma(st + 2)
        base = buf * WSZ
        for ks in range(2):
            for h in range(2):
                a(f"ds_read_b64_tr_b16 v[{32+4*ks+2*h}:{33+4*ks+2*h}], v4 offset:{base + ks*5632 + h*1408}")
            for tn in range(2):
                for h in range(2):
                    a(f"ds_read_b64_tr_b16 v[{40+8*tn+4*ks+2*h}:{41+8*tn+4*ks+2*h}], v{5+tn} offset:{st*4096 + ks*2048 + h*512}")
        for ks in range(2):
            a(f"s_waitcnt lgkmcnt({6 if ks == 0 else 0})")
            for tn in range(2):
                a(f"v_mfma_f32_32x32x16_bf16 v[{ACC+16*tn}:{ACC+16*tn+15}], v[{32+4*ks}:{35+4*ks}], v[{40+8*tn+4*ks}:{43+8*tn+4*ks}], v[{ACC+16*tn}:{ACC+16*tn+15}]")
    a("s_nop 15")
    a("s_barrier")
    HP = 360
    a(f"""
    s_mov_b32 s36, 0xbfb8aa3b         ; -log2e
    v_and_b32 v8, 31, v0
    v_bfe_u32 v9, v0, 5, 1
    v_mul_u32_u24 v8, {HP}, v8
    v_lshl_add_u32 v8, v9, 3, v8
    s_lshl_b32 s35, s30, 5
    v_add_u32 v8, s35, v8             ; t*HP + 2*(16w + 4*(l/32))
    v_add_u32 v8, {WST}, v8
    s_cmp_eq_u32 s28, 7
    s_cselect_b32 s37, 1, 0
    s_cmp_ge_u32 s30, 9
    s_cselect_b32 s38, 1, 0
    s_and_b32 s37, s37, s38
    """)
    for tn in range(2):
        for jq in range(2):
            for jj in range(0, 4, 2):
                g0 = ACC + 16*tn + 4*jq + jj
                u0 = g0 + 8
                a(f"v_cvt_pk_bf16_f32 v10, v{g0}, v{g0+1}")
                a(f"v_cvt_pk_bf16_f32 v11, v{u0}, v{u0+1}")
                a(f"v_lshlrev_b32 v12, 16, v10")
                a(f"v_and_b32 v13, 0xffff0000, v10")
                a(f"v_mul_f32 v14, s36, v12")
                a(f"v_mul_f32 v15, s36, v13")
                a(f"v_exp_f32 v14, v14")
                a(f"v_exp_f32 v15, v15")
                a("s_nop 0")
                a(f"v_add_f32 v14, 1.0, v14")
                a(f"v_add_f32 v15, 1.0, v15")
                a(f"v_rcp_f32 v14, v14")
                a(f"v_rcp_f32 v15, v15")
                a("s_nop 0")
                a(f"v_mul_f32 v12, v12, v14")
                a(f"v_mul_f32 v13, v13, v15")
                a(f"v_cvt_pk_bf16_f32 v10, v12, v13")
                a(f"v_lshlrev_b32 v12, 16, v10")
                a(f"v_and_b32 v13, 0xffff0000, v10")
                a(f"v_lshlrev_b32 v14, 16, v11")
                a(f"v_and_b32 v15, 0xffff0000, v11")
                a(f"v_mul_f32 v12, v12, v14")
                a(f"v_mul_f32 v13, v13, v15")
                a(f"v_cvt_pk_bf16_f32 v{16+jj//2}, v12, v13")
            a("s_cmp_eq_u32 s37, 0")
            lab = a.newlabel(name + "_nz")
            a(f"s_cbranch_scc1 {lab}")
            a("v_mov_b32 v16, 0")
            a("v_mov_b32 v17, 0")
            a(f"{lab}:")
            a(f"ds_write_b64 v8, v[16:17] offset:{tn*32*HP + jq*16}")
    a("s_waitcnt lgkmcnt(0)")
    a("s_barrier")
    a(f"""
    v_mul_u32_u24 v2, 2979, v0
    v_lshrrev_b32 v2, 16, v2          ; row (0..31)
    v_mul_u32_u24 v3, 22, v2
    v_sub_u32 v3, v0, v3              ; cc
    v_mul_u32_u24 v4, {HP}, v2
    v_lshl_add_u32 v4, v3, 4, v4
    v_add_u32 v4, {WST}, v4
    ds_read_b128 v[8:11], v4 offset:0
    ds_read_b128 v[12:15], v4 offset:{32*HP}
    s_lshl_b32 s35, s29, 6
    v_add_u32 v2, s35, v2
    v_mul_u32_u24 v2, {H_PITCH}, v2
    v_lshl_add_u32 v2, v3, 4, v2
    v_add_u32 v2, s31, v2
    v_add_u32 v3, {32*H_PITCH}, v2
    s_waitcnt lgkmcnt(0)
    buffer_store_dwordx4 v[8:11], v2, s[24:27], 0 offen
    buffer_store_dwordx4 v[12:15], v3, s[24:27], 0 offen
    """)
    a(f"{E}:")
    a("s_endpgm")
    kernel_desc(a, name, 128)
G1_LDS = 65536 + 3 * 22784 + 8192 + 512
```

```python
from gen_common import *

def gen_gemm2(a, name, xres, final):
    kernel_header(a, name)
    E = name + "_end"
    a(f"""
    s_cmp_ge_u32 s2, 256
    s_cbranch_scc1 {E}
    s_load_dwordx4 s[4:7], s[0:1], 80     ; w2, out
    s_load_dwordx2 s[8:9], s[0:1], 104
    s_and_b32 s28, s2, 7              ; nt
    s_lshr_b32 s29, s2, 3             ; mt
    v_lshrrev_b32 v1, 6, v0
    s_nop 1
    v_readfirstlane_b32 s30, v1
    s_waitcnt lgkmcnt(0)
    """)
    srd(a, 12, 4, 0, 1376 * 512 * 2)
    srd(a, 16, 8, WS_H, 2048 * H_PITCH)
    srd(a, 20, 8, xres, 2 * MB)
    if final:
        srd(a, 24, 6, 0, 2 * MB)
    else:
        srd(a, 24, 8, WS_XT2, 2 * MB)
        srd(a, 40, 8, WS_ST + 16384, 16384)
    a(f"""
    s_and_b32 s31, s30, 1             ; wm
    s_lshr_b32 s32, s30, 1            ; wn
    ; residual loads: d = d0+32wn+l%32 ; t = t0+32wm+4*(l/32) + 8jq
    v_and_b32 v2, 31, v0
    v_bfe_u32 v3, v0, 5, 1
    s_lshl_b32 s33, s28, 6
    s_lshl_b32 s34, s32, 5
    s_add_u32 s33, s33, s34
    v_add_u32 v4, s33, v2             ; d
    v_lshlrev_b32 v4, 12, v4
    s_lshl_b32 s33, s29, 6
    s_lshl_b32 s34, s31, 5
    s_add_u32 s33, s33, s34
    s_lshl_b32 s33, s33, 1
    v_lshl_add_u32 v4, v3, 3, v4
    v_add_u32 v4, s33, v4
    buffer_load_dwordx2 v[40:41], v4, s[20:23], 0 offen
    buffer_load_dwordx2 v[42:43], v4, s[20:23], 0 offen offset:16
    buffer_load_dwordx2 v[44:45], v4, s[20:23], 0 offen offset:32
    buffer_load_dwordx2 v[46:47], v4, s[20:23], 0 offen offset:48
    v_lshrrev_b32 v5, 3, v0           ; row / k (0..31)
    v_and_b32 v6, 7, v0               ; cpos
    v_bfe_u32 v7, v5, 1, 3
    v_xor_b32 v7, v7, v6              ; c for A
    s_lshl_b32 s33, s29, 6
    v_add_u32 v8, s33, v5
    v_mul_u32_u24 v8, {H_PITCH}, v8
    v_lshl_add_u32 v8, v7, 4, v8      ; vA0
    v_add_u32 v9, {32*H_PITCH}, v8    ; vA1
    v_bfe_u32 v7, v5, 1, 1
    v_lshlrev_b32 v7, 2, v7
    v_xor_b32 v7, v7, v6              ; c for B
    v_lshlrev_b32 v10, 10, v5
    v_lshl_add_u32 v10, v7, 4, v10
    s_lshl_b32 s33, s28, 7
    v_add_u32 v10, s33, v10           ; vB0
    v_add_u32 v11, 0x8000, v10        ; vB1
    s_lshl_b32 s35, s30, 10
    """)
    NB = 4
    def dma(st):
        b = (st % NB) * 16384
        a(f"s_add_u32 s36, s35, {b}")
        a("s_mov_b32 m0, s36")
        a(f"s_mov_b32 s37, {st*128}")
        a("buffer_load_dwordx4 v8, s[16:19], s37 offen lds")
        a(f"s_add_u32 m0, s36, 4096")
        a(f"s_mov_b32 s38, {st*65536}")
        a("buffer_load_dwordx4 v9, s[16:19], s37 offen lds")
        a(f"s_add_u32 m0, s36, 8192")
        a("s_nop 0")
        a("buffer_load_dwordx4 v10, s[12:15], s38 offen lds")
        a(f"s_add_u32 m0, s36, 12288")
        a("s_nop 0")
        a("buffer_load_dwordx4 v11, s[12:15], s38 offen lds")
    for st in range(3):
        dma(st)
    a(f"""
    v_and_b32 v12, 63, v0             ; l
    v_and_b32 v13, 31, v12            ; i
    v_lshrrev_b32 v14, 5, v12         ; kg
    s_lshl_b32 s33, s31, 5
    v_add_u32 v13, s33, v13           ; row
    v_bfe_u32 v15, v13, 1, 3          ; f
    v_lshlrev_b32 v13, 7, v13
    """)
    for ks in range(4):
        a(f"v_add_u32 v16, {2*ks}, v14")
        a(f"v_xor_b32 v16, v16, v15")
        a(f"v_lshl_add_u32 v{20+ks}, v16, 4, v13")
    a(f"""
    v_bfe_u32 v13, v12, 4, 1          ; sub
    v_bfe_u32 v15, v12, 2, 2          ; rr
    v_and_b32 v16, 3, v12             ; c4
    v_lshl_add_u32 v17, v14, 3, v15
    v_lshlrev_b32 v17, 7, v17
    v_lshl_add_u32 v17, v13, 5, v17
    v_lshl_add_u32 v17, v16, 3, v17
    v_lshrrev_b32 v15, 1, v15
    v_xor_b32 v15, s32, v15
    v_lshl_add_u32 v24, v15, 6, v17
    v_add_u32 v24, 0x2000, v24        ; vB
    """)
    ACC = 64
    for r in range(16):
        a(f"v_mov_b32 v{ACC+r}, 0")
    NS = 22
    for st in range(NS):
        b = (st % NB) * 16384
        rem = min(2, NS - 1 - st)
        a(f"s_waitcnt vmcnt({4*rem})")
        a("s_barrier")
        if st + 3 < NS:
            dma(st + 3)
        for ks in range(4):
            a(f"ds_read_b128 v[{80+4*ks}:{83+4*ks}], v{20+ks} offset:{b}")
            for h in range(2):
                a(f"ds_read_b64_tr_b16 v[{96+4*ks+2*h}:{97+4*ks+2*h}], v24 offset:{b + ks*2048 + h*512}")
        for ks in range(4):
            a(f"s_waitcnt lgkmcnt({3*(3-ks)})")
            a(f"v_mfma_f32_32x32x16_bf16 v[{ACC}:{ACC+15}], v[{80+4*ks}:{83+4*ks}], v[{96+4*ks}:{99+4*ks}], v[{ACC}:{ACC+15}]")
    a("s_nop 15")
    a("s_barrier")
    TP = 144
    a(f"""
    v_and_b32 v12, 31, v0
    v_bfe_u32 v13, v0, 5, 1
    s_lshl_b32 s33, s31, 5
    v_lshl_add_u32 v14, v13, 2, s33
    v_mul_u32_u24 v14, {TP}, v14
    s_lshl_b32 s33, s32, 5
    v_add_u32 v12, s33, v12
    v_lshl_add_u32 v14, v12, 1, v14
    """)
    for jq in range(4):
        for jj in range(0, 4, 2):
            r = ACC + 4*jq + jj
            x = 40 + 2*jq + jj//2
            a(f"v_cvt_pk_bf16_f32 v16, v{r}, v{r+1}")
            a(f"v_lshlrev_b32 v17, 16, v16")
            a(f"v_and_b32 v18, 0xffff0000, v16")
            a(f"v_lshlrev_b32 v19, 16, v{x}")
            a(f"v_and_b32 v16, 0xffff0000, v{x}")
            a(f"v_add_f32 v17, v17, v19")
            a(f"v_add_f32 v18, v18, v16")
            a(f"v_cvt_pk_bf16_f32 v{x}, v17, v18")
            a(f"ds_write_b16 v14, v{x} offset:{(8*jq+jj)*TP}")
            a(f"ds_write_b16_d16_hi v14, v{x} offset:{(8*jq+jj+1)*TP}")
        if not final:
            a(f"buffer_store_dwordx2 v[{40+2*jq}:{41+2*jq}], v4, s[24:27], 0 offen offset:{16*jq}")
    a(f"""
    s_waitcnt lgkmcnt(0)
    s_barrier
    v_lshrrev_b32 v12, 2, v0          ; row
    v_and_b32 v13, 3, v0              ; qd
    v_mul_u32_u24 v14, {TP}, v12
    v_lshl_add_u32 v14, v13, 5, v14
    ds_read_b128 v[48:51], v14
    ds_read_b128 v[52:55], v14 offset:16
    s_lshl_b32 s33, s29, 6
    v_add_u32 v12, s33, v12           ; t
    s_waitcnt lgkmcnt(0)
    """)
    if final:
        a(f"""
    v_lshlrev_b32 v12, 10, v12
    v_lshl_add_u32 v12, v13, 5, v12
    s_lshl_b32 s33, s28, 7
    v_add_u32 v12, s33, v12
    buffer_store_dwordx4 v[48:51], v12, s[24:27], 0 offen
    buffer_store_dwordx4 v[52:55], v12, s[24:27], 0 offen offset:16
    """)
    else:
        a("v_mov_b32 v62, 0")
        a("v_mov_b32 v63, 0")
        for k in range(8):
            a(f"v_lshlrev_b32 v16, 16, v{48+k}")
            a(f"v_and_b32 v17, 0xffff0000, v{48+k}")
            a("v_add_f32 v62, v62, v16")
            a("v_fma_f32 v63, v16, v16, v63")
            a("v_add_f32 v62, v62, v17")
            a("v_fma_f32 v63, v17, v17, v63")
        for off in (0x041F, 0x081F):
            a(f"ds_swizzle_b32 v16, v62 offset:{hex(off)}")
            a(f"ds_swizzle_b32 v17, v63 offset:{hex(off)}")
            a("s_waitcnt lgkmcnt(0)")
            a("v_add_f32 v62, v62, v16")
            a("v_add_f32 v63, v63, v17")
        a(f"""
    v_lshlrev_b32 v12, 3, v12
    v_cmp_eq_u32 vcc, 0, v13
    s_and_saveexec_b64 s[44:45], vcc
    buffer_atomic_add_f32 v62, v12, s[40:43], 0 offen
    buffer_atomic_add_f32 v63, v12, s[40:43], 0 offen offset:4
    """)
    a(f"{E}:")
    a("s_endpgm")
    kernel_desc(a, name, 128)
G2_LDS = 65536
```

```python
from gen_common import *

def exp_acc(a, dst, x, t, r):
    a(f"v_mul_f32 v{t}, s60, v{x}")
    a(f"v_fma_f32 v{r}, v{x}, s60, -v{t}")
    a(f"v_fma_f32 v{r}, v{x}, s61, v{r}")
    a(f"v_exp_f32 v{dst}, v{t}")
    a(f"v_mul_f32 v{r}, s62, v{r}")
    a(f"v_fma_f32 v{dst}, v{dst}, v{r}, v{dst}")

def bf16_round(a, v):
    a(f"v_cvt_pk_bf16_f32 v{v}, v{v}, v{v}")
    a(f"v_lshlrev_b32 v{v}, 16, v{v}")

def phi(a, tile, dst, i, t1, t2):
    if tile == 0:
        a(f"v_lshrrev_b32 v{t1}, 3, v{i}")
        a(f"v_lshlrev_b32 v{t1}, 7, v{t1}")
        a(f"v_and_b32 v{t2}, 7, v{i}")
        a(f"v_or_b32 v{dst}, v{t1}, v{t2}")
    elif tile == 1:
        a(f"v_lshrrev_b32 v{t1}, 2, v{i}")
        a(f"v_lshlrev_b32 v{t1}, 7, v{t1}")
        a(f"v_and_b32 v{t2}, 3, v{i}")
        a(f"v_lshlrev_b32 v{t2}, 1, v{t2}")
        a(f"v_add3_u32 v{dst}, v{t1}, v{t2}, s63")
        a(f"v_lshrrev_b32 v{t1}, 1, v{i}")
        a(f"v_lshlrev_b32 v{t1}, 7, v{t1}")
        a(f"v_and_b32 v{t2}, 1, v{i}")
        a(f"v_lshlrev_b32 v{t2}, 2, v{t2}")
        a(f"v_add_u32 v{t1}, v{t1}, v{t2}")
        a(f"v_cmp_lt_u32 vcc, 7, v{i}")
        a("s_nop 1")
        a(f"v_cndmask_b32 v{dst}, v{dst}, v{t1}, vcc")
    else:
        a(f"v_lshlrev_b32 v{t1}, 7, v{i}")
        a(f"v_add_u32 v{dst}, 0x400, v{t1}")

def gen_prep(a):
    name = "prep_kernel"
    kernel_header(a, name)
    a("""
    s_cmp_ge_u32 s2, 640
    s_cbranch_scc1 prep_end
    s_load_dwordx2 s[4:5], s[0:1], 0
    s_load_dwordx4 s[8:11], s[0:1], 8
    s_load_dwordx4 s[12:15], s[0:1], 24
    s_load_dwordx2 s[16:17], s[0:1], 40
    s_load_dwordx2 s[18:19], s[0:1], 104
    s_waitcnt lgkmcnt(0)
    s_cmp_lt_u32 s2, 128
    s_cbranch_scc1 prep_ln
    s_sub_u32 s20, s2, 128
    """)
    srd(a, 24, 8, 0, 131072)
    srd(a, 28, 10, 0, 131072)
    srd(a, 32, 12, 0, 131072)
    srd(a, 36, 14, 0, 131072)
    srd(a, 40, 16, 0, 1024)
    srd(a, 44, 18, WS_KT, 512 * KT_PITCH)
    a("""
    s_mov_b32 s60, 0x3fb8aa3b
    s_mov_b32 s61, 0x32a57060
    s_mov_b32 s62, 0x3f317218
    s_mov_b32 s63, 256
    v_and_b32 v1, 127, v0
    s_lshl_b32 s21, s20, 8
    v_lshlrev_b32 v2, 1, v1
    v_add_u32 v2, s21, v2
    buffer_load_ushort v3, v2, s[24:27], 0 offen
    buffer_load_ushort v4, v2, s[28:31], 0 offen
    buffer_load_ushort v5, v2, s[32:35], 0 offen
    buffer_load_ushort v6, v2, s[36:39], 0 offen
    s_lshl_b32 s21, s20, 1
    v_mov_b32 v7, s21
    buffer_load_ushort v7, v7, s[40:43], 0 offen
    s_waitcnt vmcnt(0)
    v_lshlrev_b32 v3, 16, v3
    v_lshlrev_b32 v4, 16, v4
    v_lshlrev_b32 v5, 16, v5
    v_lshlrev_b32 v6, 16, v6
    v_lshlrev_b32 v7, 16, v7
    """)
    exp_acc(a, 8, 7, 12, 13)
    bf16_round(a, 8)
    exp_acc(a, 9, 3, 12, 13)
    bf16_round(a, 9)
    a("""
    v_mul_f32 v9, v9, v8          ; eA*dt
    v_mul_f32 v4, v4, v8          ; a_i
    v_mul_f32 v5, v5, v8          ; Cr'
    v_mul_f32 v6, v6, v8          ; Ci'
    v_mul_f32 v20, s60, v9
    v_sub_f32 v20, 0, v20
    v_mul_f32 v21, 0.15915494, v4 ; wi
    v_add_f32 v22, v5, v5
    v_add_f32 v23, v6, v6
    v_lshlrev_b32 v2, 4, v1
    ds_write_b128 v2, v[20:23]
    v_and_b32 v10, 15, v0         ; i
    v_bfe_u32 v11, v0, 4, 2       ; kq
    v_lshrrev_b32 v12, 6, v0      ; wave
    v_lshlrev_b32 v12, 9, v12     ; 512*w
    v_lshl_add_u32 v12, v11, 4, v12
    v_lshlrev_b32 v13, 3, v10
    v_cvt_f32_u32 v13, v13        ; pB
    """)
    for T in range(3):
        phi(a, T, 14 + T, 10, 18, 19)
        a(f"v_cvt_f32_u32 v{14+T}, v{14+T}")
    for r in range(12):
        a(f"v_mov_b32 v{40+r}, 0")
    a("s_waitcnt lgkmcnt(0)")
    a("s_barrier")
    def entry(p, er_, ei_):
        a(f"v_mul_f32 v32, v20, v{p}")
        a(f"v_exp_f32 v32, v32")
        a(f"v_mul_f32 v33, v21, v{p}")
        a(f"v_fract_f32 v33, v33")
        a(f"v_sin_f32 v34, v33")
        a(f"v_cos_f32 v35, v33")
        a("s_nop 0")
        a(f"v_mul_f32 v{er_}, v32, v35")
        a(f"v_mul_f32 v{ei_}, v32, v34")
    for s in range(8):
        a(f"ds_read_b128 v[20:23], v12 offset:{64*s}")
        a("s_waitcnt lgkmcnt(0)")
        entry(13, 24, 25)
        for T in range(3):
            entry(14 + T, 26, 27)
            a("v_mul_f32 v28, v22, v26")
            a("v_fma_f32 v28, -v23, v27, v28")
            a("v_mul_f32 v29, v22, v27")
            a("v_fma_f32 v29, -v23, v26, -v29")
            a("s_nop 1")
            a(f"v_mfma_f32_16x16x4_f32 v[{40+4*T}:{43+4*T}], v28, v24, v[{40+4*T}:{43+4*T}]")
            a(f"v_mfma_f32_16x16x4_f32 v[{40+4*T}:{43+4*T}], v29, v25, v[{40+4*T}:{43+4*T}]")
    a("s_nop 15")
    a("s_nop 7")
    a("""
    v_lshrrev_b32 v12, 6, v0
    v_mul_u32_u24 v12, 3072, v12
    v_and_b32 v18, 63, v0
    v_lshl_add_u32 v12, v18, 2, v12
    """)
    for r in range(12):
        a(f"ds_write_b32 v12, v{40+r} offset:{2048 + 256*r}")
    a("s_waitcnt lgkmcnt(0)")
    a("s_barrier")
    a("""
    v_lshrrev_b32 v12, 6, v0          ; r
    v_and_b32 v18, 63, v0             ; lane
    v_lshlrev_b32 v19, 8, v12
    v_lshl_add_u32 v19, v18, 2, v19   ; r*256 + lane*4
    v_lshrrev_b32 v30, 4, v18
    v_lshl_add_u32 v30, v30, 2, v12
    v_and_b32 v31, 15, v18
    v_lshlrev_b32 v31, 3, v31         ; 8*col
    """)
    for T in range(3):
        for w in range(4):
            a(f"ds_read_b32 v{32+w}, v19 offset:{2048 + 3072*w + 1024*T}")
        phi(a, T, 36, 30, 37, 38)
        a("v_add_u32 v36, v36, v31")
        a("v_lshlrev_b32 v36, 2, v36")
        a("s_waitcnt lgkmcnt(0)")
        a("v_add_f32 v32, v32, v33")
        a("v_add_f32 v34, v34, v35")
        a("v_add_f32 v32, v32, v34")
        a("ds_write_b32 v36, v32 offset:14336")
    a("s_waitcnt lgkmcnt(0)")
    a("s_barrier")
    a("s_mul_i32 s21, s20, 9216")
    for rnd in range(2):
        if rnd == 1:
            a("v_cmp_gt_u32 vcc, 32, v0")
            a("s_and_saveexec_b64 s[64:65], vcc")
            a("s_cbranch_execz prep_kdone")
        a(f"v_lshlrev_b32 v12, 3, v0")
        a(f"v_add_u32 v12, {hex((2048*rnd - 120) & 0xffffffff)}, v12")
        for e in range(8):
            a(f"v_add_u32 v{50+e}, {e}, v12")
            a(f"v_cmp_gt_u32 vcc, 0x800, v{50+e}")
            a("s_nop 1")
            a(f"v_cndmask_b32 v{60+e}, 0, 1.0, vcc")
            a(f"v_cndmask_b32 v{50+e}, 0, v{50+e}, vcc")
            a(f"v_cvt_f32_u32 v{50+e}, v{50+e}")
        for e in range(0, 8, 2):
            a(f"v_cvt_pk_bf16_f32 v{50+e}, v{50+e}, v{51+e}")
            a(f"v_and_b32 v{51+e}, 0xffff0000, v{50+e}")
            a(f"v_lshlrev_b32 v{50+e}, 16, v{50+e}")
        for e in range(8):
            a(f"v_cvt_u32_f32 v{50+e}, v{50+e}")
            a(f"v_lshlrev_b32 v{50+e}, 2, v{50+e}")
            a(f"ds_read_b32 v{50+e}, v{50+e} offset:14336")
        a("s_waitcnt lgkmcnt(0)")
        for e in range(8):
            a(f"v_mul_f32 v{50+e}, v{50+e}, v{60+e}")
        for e in range(0, 8, 2):
            a(f"v_cvt_pk_bf16_f32 v{70+e//2}, v{50+e}, v{51+e}")
            a(f"v_lshlrev_b32 v60, 16, v{70+e//2}")
            a(f"v_and_b32 v61, 0xffff0000, v{70+e//2}")
            a(f"v_sub_f32 v60, v{50+e}, v60")
            a(f"v_sub_f32 v61, v{51+e}, v61")
            a(f"v_cvt_pk_bf16_f32 v{74+e//2}, v60, v61")
        a(f"v_lshlrev_b32 v12, 4, v0")
        a(f"v_add_u32 v12, s21, v12")
        if rnd == 1:
            a("v_add_u32 v12, 0x1000, v12")
        a("buffer_store_dwordx4 v[70:73], v12, s[44:47], 0 offen")
        a("v_add_u32 v12, 4608, v12")
        a("buffer_store_dwordx4 v[74:77], v12, s[44:47], 0 offen")
    a("prep_kdone:")
    a("s_endpgm")
    a("prep_ln:")
    srd(a, 24, 4, 0, 2048 * 512 * 2)
    srd(a, 28, 18, WS_XT0, 2 * MB)
    srd(a, 32, 18, WS_ST, 32768)
    a("""
    s_lshl_b32 s21, s2, 4             ; t0
    v_lshrrev_b32 v1, 4, v0           ; r
    v_and_b32 v2, 15, v0              ; c
    v_add_u32 v3, s21, v1             ; t
    v_lshlrev_b32 v3, 10, v3
    v_lshl_add_u32 v3, v2, 4, v3      ; t*1024 + c*16
    buffer_load_dwordx4 v[8:11], v3, s[24:27], 0 offen
    buffer_load_dwordx4 v[12:15], v3, s[24:27], 0 offen offset:256
    buffer_load_dwordx4 v[16:19], v3, s[24:27], 0 offen offset:512
    buffer_load_dwordx4 v[20:23], v3, s[24:27], 0 offen offset:768
    v_mul_u32_u24 v4, 1040, v1
    v_lshl_add_u32 v4, v2, 4, v4
    v_mov_b32 v6, 0
    v_mov_b32 v7, 0
    s_waitcnt vmcnt(0)
    ds_write_b128 v4, v[8:11]
    ds_write_b128 v4, v[12:15] offset:256
    ds_write_b128 v4, v[16:19] offset:512
    ds_write_b128 v4, v[20:23] offset:768
    """)
    for k in range(16):
        a(f"v_lshlrev_b32 v24, 16, v{8+k}")
        a(f"v_and_b32 v25, 0xffff0000, v{8+k}")
        a("v_add_f32 v6, v6, v24")
        a("v_fma_f32 v7, v24, v24, v7")
        a("v_add_f32 v6, v6, v25")
        a("v_fma_f32 v7, v25, v25, v7")
    for off in (0x041F, 0x081F, 0x101F, 0x201F):
        a(f"ds_swizzle_b32 v24, v6 offset:{hex(off)}")
        a(f"ds_swizzle_b32 v25, v7 offset:{hex(off)}")
        a("s_waitcnt lgkmcnt(0)")
        a("v_add_f32 v6, v6, v24")
        a("v_add_f32 v7, v7, v25")
    a("""
    v_add_u32 v3, s21, v1
    v_lshlrev_b32 v3, 3, v3
    v_mov_b32 v24, 0
    v_mov_b32 v25, 0
    v_cmp_eq_u32 vcc, 0, v2
    s_and_saveexec_b64 s[64:65], vcc
    buffer_store_dwordx2 v[6:7], v3, s[32:35], 0 offen
    v_add_u32 v3, 0x4000, v3
    buffer_store_dwordx2 v[24:25], v3, s[32:35], 0 offen
    s_mov_b64 exec, s[64:65]
    s_waitcnt lgkmcnt(0)
    s_barrier
    v_lshlrev_b32 v4, 2, v0
    """)
    for r in range(16):
        a(f"ds_read_b32 v{8+r}, v4 offset:{1040*r}")
    a("s_mov_b32 s60, 0x05040100")
    a("s_mov_b32 s61, 0x07060302")
    a("s_waitcnt lgkmcnt(0)")
    for k in range(8):
        a(f"v_perm_b32 v{24+k}, v{9+2*k}, v{8+2*k}, s60")
        a(f"v_perm_b32 v{32+k}, v{9+2*k}, v{8+2*k}, s61")
    a("""
    v_lshlrev_b32 v4, 13, v0
    s_lshl_b32 s21, s2, 5             ; t0*2
    v_add_u32 v4, s21, v4
    buffer_store_dwordx4 v[24:27], v4, s[28:31], 0 offen
    buffer_store_dwordx4 v[28:31], v4, s[28:31], 0 offen offset:16
    v_add_u32 v4, 0x1000, v4
    buffer_store_dwordx4 v[32:35], v4, s[28:31], 0 offen
    buffer_store_dwordx4 v[36:39], v4, s[28:31], 0 offen offset:16
    """)
    a("prep_end:")
    a("s_endpgm")
    kernel_desc(a, name, 80)
```

```python
import sys
from gen_common import *
from gen_k0 import gen_prep
from gen_conv import gen_conv
from gen_g1 import gen_gemm1, G1_LDS
from gen_g2 import gen_gemm2, G2_LDS

def build():
    a = Asm()
    L = []
    L.append("; @launch kernel=prep_kernel grid=(640,1,1) block=(256,1,1) lds=26624")
    L.append("; @launch kernel=conv1_kernel grid=(512,1,1) block=(256,1,1) lds=46592")
    L.append(f"; @launch kernel=gemm1a_kernel grid=(256,1,1) block=(704,1,1) lds={G1_LDS}")
    L.append(f"; @launch kernel=gemm2a_kernel grid=(256,1,1) block=(256,1,1) lds={G2_LDS}")
    L.append("; @launch kernel=conv2_kernel grid=(512,1,1) block=(256,1,1) lds=46592")
    L.append(f"; @launch kernel=gemm1b_kernel grid=(256,1,1) block=(704,1,1) lds={G1_LDS}")
    L.append(f"; @launch kernel=gemm2b_kernel grid=(256,1,1) block=(256,1,1) lds={G2_LDS}")
    hdr = "\n".join(L) + "\n"
    a.raw('.amdgcn_target "amdgcn-amd-amdhsa--gfx950"')
    a.raw(".text")
    gen_prep(a)
    gen_conv(a, "conv1_kernel", WS_XT0, WS_XT1, 0)
    gen_gemm1(a, "gemm1a_kernel", WS_XT1)
    gen_gemm2(a, "gemm2a_kernel", WS_XT1, False)
    gen_conv(a, "conv2_kernel", WS_XT2, WS_XT3, 1)
    gen_gemm1(a, "gemm1b_kernel", WS_XT3)
    gen_gemm2(a, "gemm2b_kernel", WS_XT3, True)
    return hdr + a.text()

if __name__ == "__main__":
    out = sys.argv[1]
    open(out, "w").write(build())
```

```python
class Asm:
    def __init__(self):
        self.lines = []
        self._lab = 0
    def __call__(self, s):
        for ln in s.strip("\n").split("\n"):
            ln = ln.strip()
            if not ln: continue
            if ln.endswith(":"):
                self.lines.append(ln)
            else:
                self.lines.append("    " + ln)
    def raw(self, s):
        self.lines.append(s)
    def newlabel(self, p="L"):
        self._lab += 1
        return f"{p}_{self._lab}"
    def text(self):
        return "\n".join(self.lines) + "\n"

NAME = "interleave_layers__ssm_conv_s4d__glu_gated_swiglu__prompt"

MB = 1 << 20
XTP = 4352
XTSZ = 512 * XTP
WS_XT0 = 0
WS_XT1 = 3 * MB
WS_XT2 = 6 * MB
WS_XT3 = 9 * MB
WS_H   = 12 * MB
WS_KT  = 20 * MB
WS_ST  = 28 * MB
KT_PITCH = 9216
H_PITCH = 1408 * 2

def kernel_header(a, name):
    a.raw(f".globl {name}")
    a.raw(".p2align 8")
    a.raw(f".type {name},@function")
    a.raw(f"{name}:")

def kernel_desc(a, name, vgpr, sgpr=102, accum=None):
    if STAMP: vgpr = max(vgpr, 164)
    vg = (vgpr + 7) // 8 * 8
    acc = accum if accum is not None else (vgpr + 3) // 4 * 4
    a.raw(".section .rodata,\"a\"")
    a.raw(".p2align 6")
    a.raw(f".amdhsa_kernel {name}")
    a.raw(f"  .amdhsa_next_free_vgpr {vgpr}")
    a.raw(f"  .amdhsa_next_free_sgpr {sgpr}")
    a.raw(f"  .amdhsa_accum_offset {acc}")
    a.raw("  .amdhsa_group_segment_fixed_size 0")
    a.raw("  .amdhsa_kernarg_size 112")
    a.raw("  .amdhsa_user_sgpr_count 2")
    a.raw("  .amdhsa_user_sgpr_kernarg_segment_ptr 1")
    a.raw("  .amdhsa_system_sgpr_workgroup_id_x 1")
    a.raw(".end_amdhsa_kernel")
    a.raw(".text")

def srd(a, R, ptr, off, size):
    if off:
        a(f"s_add_u32 s{R}, s{ptr}, {hex(off)}")
        a(f"s_addc_u32 s{R+1}, s{ptr+1}, 0")
    else:
        a(f"s_mov_b32 s{R}, s{ptr}")
        a(f"s_mov_b32 s{R+1}, s{ptr+1}")
    a(f"s_mov_b32 s{R+2}, {hex(size)}")
    a(f"s_mov_b32 s{R+3}, 0x00020000")


STAMP = False
def stamp(a, idx, dbg_pair=90):
    if not STAMP: return
    lab = a.newlabel("stamp")
    a("s_memtime s[92:93]")
    a("s_waitcnt lgkmcnt(0)")
    a("s_cmp_lg_u32 s2, %d" % (STAMP_WG))
    a(f"s_cbranch_scc1 {lab}")
    a("v_cmp_eq_u32 vcc, 0, v0")
    a("s_and_saveexec_b64 s[94:95], vcc")
    a(f"s_cbranch_execz {lab}_r")
    a("v_mov_b32 v162, s92")
    a(f"v_mov_b32 v163, {idx*4}")
    a("global_store_dword v163, v162, s[90:91]")
    a(f"{lab}_r:")
    a("s_mov_b64 exec, s[94:95]")
    a(f"{lab}:")
STAMP_WG = 200
def stamp_init(a):
    if not STAMP: return
    a("s_load_dwordx2 s[90:91], s[0:1], 96")
    a("s_waitcnt lgkmcnt(0)")
```

```python
from gen_common import *

def gen_conv(a, name, xin, xout, layer):
    kernel_header(a, name)
    E = name + "_end"
    a(f"""
    s_cmp_ge_u32 s2, 512
    s_cbranch_scc1 {E}
    s_load_dwordx2 s[4:5], s[0:1], 48
    s_load_dwordx2 s[6:7], s[0:1], 104
    s_and_b32 s24, s2, 0x1fe
    s_lshl_b32 s24, s24, 1
    s_waitcnt lgkmcnt(0)
    s_load_dword s25, s[4:5], s24
    """)
    srd(a, 8, 6, xin, XTSZ)
    srd(a, 12, 6, xout, XTSZ)
    srd(a, 16, 6, WS_KT, 512 * KT_PITCH)
    srd(a, 20, 6, WS_ST + layer * 16384, 16384)
    CS = 4384
    UR, KH, KL, RED, XCH = 0, 35072, 35072 + 4608, 0, 44288
    stamp_init(a)
    stamp(a, 0)
    a(f"""
    s_mul_i32 s26, s2, {XTP}
    v_lshl_add_u32 v1, v0, 4, s26
    buffer_load_dwordx4 v[4:7], v1, s[8:11], 0 offen
    v_lshlrev_b32 v2, 6, v0
    buffer_load_dwordx4 v[32:35], v2, s[20:23], 0 offen
    buffer_load_dwordx4 v[36:39], v2, s[20:23], 0 offen offset:16
    buffer_load_dwordx4 v[40:43], v2, s[20:23], 0 offen offset:32
    buffer_load_dwordx4 v[44:47], v2, s[20:23], 0 offen offset:48
    s_mul_i32 s27, s2, 9216
    v_lshl_add_u32 v2, v0, 4, s27
    buffer_load_dwordx4 v[48:51], v2, s[16:19], 0 offen
    v_add_u32 v3, 0x1000, v2
    buffer_load_dwordx4 v[52:55], v3, s[16:19], 0 offen
    v_add_u32 v3, 0x2000, v2
    v_cmp_gt_u32 vcc, 64, v0
    s_and_saveexec_b64 s[28:29], vcc
    buffer_load_dwordx4 v[56:59], v3, s[16:19], 0 offen
    s_mov_b64 exec, s[28:29]
    v_mov_b32 v60, 0
    v_mov_b32 v61, 0
    v_mov_b32 v62, 0
    v_mov_b32 v63, 0
    v_lshrrev_b32 v3, 4, v0
    v_mul_u32_u24 v3, {CS}, v3
    v_and_b32 v2, 15, v0
    v_lshl_add_u32 v3, v2, 4, v3
    v_cmp_gt_u32 vcc, 128, v0
    s_and_saveexec_b64 s[28:29], vcc
    ds_write_b128 v3, v[60:63] offset:{257*16}
    s_mov_b64 exec, s[28:29]
    v_mov_b32 v3, {XCH}
    v_cmp_eq_u32 vcc, 0, v0
    s_and_saveexec_b64 s[28:29], vcc
    ds_write_b128 v3, v[60:63]
    s_mov_b64 exec, s[28:29]
    s_mov_b32 s30, 0x3b000000         ; 1/512
    s_mov_b32 s31, 0x3727c5ac         ; 1e-5
    s_waitcnt vmcnt(3)
    """)
    stamp(a, 1)
    for k in range(4):
        a(f"v_lshlrev_b32 v{8+2*k}, 16, v{4+k}")
        a(f"v_and_b32 v{9+2*k}, 0xffff0000, v{4+k}")
    for e in range(8):
        S, Q = 32 + 2*e, 33 + 2*e
        a(f"v_mul_f32 v{S}, s30, v{S}")
        a(f"v_mul_f32 v{Q}, s30, v{Q}")
        a(f"v_fma_f32 v{Q}, -v{S}, v{S}, v{Q}")
        a(f"v_max_f32 v{Q}, 0, v{Q}")
        a(f"v_cvt_pk_bf16_f32 v{S}, v{S}, v{Q}")
        a(f"v_and_b32 v{Q}, 0xffff0000, v{S}")
        a(f"v_lshlrev_b32 v{S}, 16, v{S}")
        a(f"v_add_f32 v{Q}, s31, v{Q}")
        a(f"v_sub_f32 v{16+e}, v{8+e}, v{S}")
        a(f"v_cvt_pk_bf16_f32 v{Q}, v{Q}, v{16+e}")
        a(f"v_and_b32 v{16+e}, 0xffff0000, v{Q}")
        a(f"v_lshlrev_b32 v{Q}, 16, v{Q}")
        a(f"v_sqrt_f32 v{Q}, v{Q}")
        a("s_nop 0")
        a(f"v_cvt_pk_bf16_f32 v{Q}, v{Q}, v{Q}")
        a(f"v_lshlrev_b32 v{Q}, 16, v{Q}")
        a(f"v_rcp_f32 v{S}, v{Q}")
        a("s_nop 0")
        a(f"v_mul_f32 v60, v{16+e}, v{S}")
        a(f"v_fma_f32 v61, -v60, v{Q}, v{16+e}")
        a(f"v_fma_f32 v{16+e}, v61, v{S}, v60")
    for k in range(4):
        a(f"v_cvt_pk_bf16_f32 v{24+k}, v{16+2*k}, v{17+2*k}")
    for k in range(4):
        a(f"v_lshlrev_b32 v{16+2*k}, 16, v{24+k}")
        a(f"v_and_b32 v{17+2*k}, 0xffff0000, v{24+k}")
    a(f"""
    v_lshlrev_b32 v3, 4, v0
    ds_write_b128 v3, v[24:27] offset:{XCH+16}
    s_waitcnt vmcnt(0)
    ds_write_b128 v3, v[48:51] offset:{KH}
    ds_write_b128 v3, v[52:55] offset:{KH+4096}
    v_cmp_gt_u32 vcc, 64, v0
    s_and_saveexec_b64 s[28:29], vcc
    ds_write_b128 v3, v[56:59] offset:{KH+8192}
    s_mov_b64 exec, s[28:29]
    s_waitcnt lgkmcnt(0)
    s_barrier
    ds_read_b128 v[32:35], v3 offset:{XCH}
    s_mov_b32 s31, 0xffff
    v_sub_u32 v2, 4096, v3
    s_waitcnt lgkmcnt(0)
    """)
    D = [32, 33, 34, 35, 24, 25, 26, 27]
    for r in range(8):
        O = 36 + 4 * (r & 1)
        for k in range(4):
            sidx = 8 + r - 2 * k
            if sidx & 1:
                a(f"v_alignbit_b32 v{O+k}, v{D[(sidx-1)//2]}, v{D[(sidx-1)//2]}, 16")
            else:
                a(f"v_bfi_b32 v{O+k}, s31, v{D[sidx//2]}, v{D[sidx//2-1]}")
        a(f"ds_write_b128 v2, v[{O}:{O+3}] offset:{r*CS}")
    a(f"""
    v_and_b32 v1, 15, v0              ; i / c
    v_bfe_u32 v2, v0, 4, 2            ; kq
    v_lshrrev_b32 v3, 6, v0           ; w
    v_add_u32 v4, v1, v2
    v_lshlrev_b32 v4, 4, v4
    v_lshl_add_u32 v4, v3, 7, v4      ; 16(i+kq) + 128w
    v_and_b32 v5, 7, v1               ; r
    v_lshrrev_b32 v6, 3, v1           ; a1
    v_lshlrev_b32 v7, 8, v6
    v_mul_u32_u24 v5, {CS}, v5
    v_sub_u32 v5, v5, v7              ; r*CS - 256a1
    v_add_u32 v5, {3856-3584}, v5
    v_lshl_add_u32 v5, v3, 7, v5
    v_lshl_add_u32 v5, v2, 4, v5
    s_waitcnt lgkmcnt(0)
    s_barrier
    """)
    stamp(a, 2)
    ACC = 224
    for r in range(32):
        a(f"v_mov_b32 v{ACC+r}, 0")
    def load_slot(k):
        ph, sl = divmod(k, 8)
        base = 32 if ph == 0 else 128
        AH, AL, B = base, base + 32, base + 64
        a(f"ds_read_b128 v[{B+4*sl}:{B+4*sl+3}], v5 offset:{512*(7-sl) + 64*ph}")
        a(f"ds_read_b128 v[{AH+4*sl}:{AH+4*sl+3}], v4 offset:{KH + 512*sl + 64*ph}")
        a(f"ds_read_b128 v[{AL+4*sl}:{AL+4*sl+3}], v4 offset:{KL + 512*sl + 64*ph}")
    def mfma_slot(k):
        ph, sl = divmod(k, 8)
        base = 32 if ph == 0 else 128
        AH, AL, B = base, base + 32, base + 64
        pairs = [(sl, be) for be in range(0, min(sl, 7 - sl) + 1)] + [(al, sl) for al in range(0, min(sl - 1, 7 - sl) + 1)]
        for X in (AH, AL):
            for al, be in pairs:
                q = al + be
                a(f"v_mfma_f32_16x16x32_bf16 v[{ACC+4*q}:{ACC+4*q+3}], v[{X+4*al}:{X+4*al+3}], v[{B+4*be}:{B+4*be+3}], v[{ACC+4*q}:{ACC+4*q+3}]")
    PD = 3
    for k in range(PD):
        load_slot(k)
    for k in range(16):
        if k + PD < 16:
            load_slot(k + PD)
        ahead = min(PD, 15 - k)
        a(f"s_waitcnt lgkmcnt({3*ahead})")
        mfma_slot(k)
    a("s_nop 15")
    stamp(a, 3)
    a("s_barrier")
    a(f"""
    v_and_b32 v1, 15, v0
    v_bfe_u32 v2, v0, 4, 2            ; g
    v_lshrrev_b32 v3, 6, v0           ; w
    v_and_b32 v5, 7, v1               ; r
    v_lshrrev_b32 v6, 3, v1           ; a1
    v_and_b32 v7, 1, v2
    v_lshlrev_b32 v7, 3, v7
    v_lshl_add_u32 v7, v6, 4, v7
    v_lshl_add_u32 v5, v6, 7, v5      ; 128a1 + r
    v_lshl_add_u32 v5, v2, 5, v5      ; + 32g
    v_lshl_add_u32 v5, v3, 11, v5     ; + 2048w
    """)
    for j in range(4):
        a(f"v_xor_b32 v{32+j}, {8*j}, v7")
        a(f"v_add_lshl_u32 v{32+j}, v{32+j}, v5, 2")
    for q in range(8):
        for j in range(4):
            a(f"ds_write_b32 v{32+j}, v{ACC+4*q+j} offset:{RED + 1024*q}")
    a(f"""
    v_bfe_u32 v1, v0, 2, 1
    v_bfe_u32 v2, v0, 4, 1
    v_lshlrev_b32 v1, 3, v1
    v_lshl_add_u32 v1, v2, 4, v1
    v_lshlrev_b32 v2, 3, v0
    v_xor_b32 v1, v1, v2
    v_lshlrev_b32 v1, 2, v1
    s_waitcnt lgkmcnt(0)
    s_barrier
    """)
    stamp(a, 4)
    for w in range(4):
        a(f"ds_read_b128 v[{32+8*w}:{35+8*w}], v1 offset:{RED + 8192*w}")
        a(f"ds_read_b128 v[{36+8*w}:{39+8*w}], v1 offset:{RED + 8192*w + 16}")
    a("""
    s_and_b32 s24, s2, 1
    s_lshl_b32 s24, s24, 4
    s_lshr_b32 s25, s25, s24
    s_lshl_b32 s25, s25, 16
    s_waitcnt lgkmcnt(0)
    """)
    for e in range(8):
        a(f"v_add_f32 v{32+e}, v{32+e}, v{40+e}")
        a(f"v_add_f32 v{48+e}, v{48+e}, v{56+e}")
        a(f"v_add_f32 v{32+e}, v{32+e}, v{48+e}")
        a(f"v_mul_f32 v{40+e}, s25, v{16+e}")
        a(f"v_cvt_pk_bf16_f32 v{32+e}, v{32+e}, v{40+e}")
        a(f"v_and_b32 v{40+e}, 0xffff0000, v{32+e}")
        a(f"v_lshlrev_b32 v{32+e}, 16, v{32+e}")
        a(f"v_add_f32 v{32+e}, v{32+e}, v{40+e}")
        a(f"v_cvt_pk_bf16_f32 v{32+e}, v{32+e}, v{32+e}")
        a(f"v_lshlrev_b32 v{32+e}, 16, v{32+e}")
        a(f"v_add_f32 v{32+e}, v{32+e}, v{8+e}")
    for k in range(4):
        a(f"v_cvt_pk_bf16_f32 v{40+k}, v{32+2*k}, v{33+2*k}")
    a("""
    v_lshl_add_u32 v1, v0, 4, s26
    buffer_store_dwordx4 v[40:43], v1, s[12:15], 0 offen
    """)
    stamp(a, 5)
    a(f"{E}:")
    a("s_endpgm")
    kernel_desc(a, name, 256)
```

```python
from gen_common import *

NWB = 6
WSZ = 22784
UPOFF = 11392
URING = 0
SCR = 12288
FIN = SCR + 8192
WST = 21504
G1_LDS = WST + NWB * WSZ

import os
VAR = os.environ.get('G1VAR', '')
def gen_gemm1(a, name, xin):
    kernel_header(a, name)
    E = name + "_end"
    a(f"""
    s_cmp_ge_u32 s2, 256
    s_cbranch_scc1 {E}
    s_load_dwordx4 s[4:7], s[0:1], 64
    s_load_dwordx2 s[8:9], s[0:1], 104
    s_and_b32 s28, s2, 7              ; ft
    s_lshr_b32 s29, s2, 3             ; mt
    v_lshrrev_b32 v1, 6, v0
    s_nop 1
    v_readfirstlane_b32 s30, v1
    s_waitcnt lgkmcnt(0)
    """)
    srd(a, 12, 4, 0, 512 * 1376 * 2)
    srd(a, 16, 6, 0, 512 * 1376 * 2)
    srd(a, 20, 8, xin, XTSZ)
    srd(a, 24, 8, WS_H, 2048 * H_PITCH)
    stamp_init(a)
    stamp(a, 0)
    a(f"""
    ; W DMA lane offsets: k = tid/22, cc = tid%22
    v_mul_u32_u24 v2, 2979, v0
    v_lshrrev_b32 v2, 16, v2          ; k
    v_mul_u32_u24 v3, 22, v2
    v_sub_u32 v3, v0, v3              ; cc
    v_mul_u32_u24 v2, 2752, v2
    v_lshl_add_u32 v2, v3, 4, v2      ; k*2752 + cc*16
    s_mul_i32 s31, s28, 352           ; f0*2
    v_add_u32 v2, s31, v2
    s_lshl_b32 s32, s30, 10           ; wave*1024
    """)
    def dma_to(a, stage):
        buf = stage % NWB
        a(f"s_add_u32 s33, s32, {WST + buf*WSZ}")
        a(f"s_mov_b32 m0, s33")
        a(f"s_mov_b32 s34, {stage * 88064}")
        a(f"buffer_load_dwordx4 v2, s[12:15], s34 offen lds")
        a(f"s_add_u32 m0, s33, {UPOFF}")
        a(f"s_nop 0")
        a(f"buffer_load_dwordx4 v2, s[16:19], s34 offen lds")
    def dma(stage): dma_to(a, stage)
    PF = NWB - 1
    a(f"""
    s_cmp_ge_u32 s30, 8
    s_cbranch_scc1 {name}_ln_dma
    v_and_b32 v4, 7, v0               ; c
    v_lshrrev_b32 v5, 3, v0           ; g (0..63)
    s_lshl_b32 s35, s29, 7            ; t0*2
    v_mul_u32_u24 v6, {XTP}, v5
    v_lshl_add_u32 v6, v4, 4, v6
    v_add_u32 v6, s35, v6
    """)
    for e in range(8):
        a(f"buffer_load_dwordx4 v[{32+4*e}:{35+4*e}], v6, s[20:23], 0 offen")
        if e < 7:
            a(f"v_add_u32 v6, {64*XTP}, v6")
    for k in range(16):
        a(f"v_mov_b32 v{64+k}, 0")
    for e in range(8):
        a(f"s_waitcnt vmcnt({7-e})")
        for k in range(4):
            X = 104 + 8*(e & 1) + 2*k
            a(f"v_lshlrev_b32 v{X}, 16, v{32+4*e+k}")
            a(f"v_and_b32 v{X+1}, 0xffff0000, v{32+4*e+k}")
            a(f"v_pk_add_f32 v[{64+2*k}:{65+2*k}], v[{64+2*k}:{65+2*k}], v[{X}:{X+1}]")
            a(f"v_pk_fma_f32 v[{72+2*k}:{73+2*k}], v[{X}:{X+1}], v[{X}:{X+1}], v[{72+2*k}:{73+2*k}]")
    a(f"{name}_ln_dma:")
    for st in range(PF):
        dma(st)
    a("s_cmp_ge_u32 s30, 8")
    a(f"s_cbranch_scc1 {name}_ln_skip1")
    stamp(a, 1)
    for off in (0x201F, 0x401F):
        for k in range(16):
            a(f"ds_swizzle_b32 v{80+k}, v{64+k} offset:{hex(off)}")
        a("s_waitcnt lgkmcnt(0)")
        for k in range(16):
            a(f"v_add_f32 v{64+k}, v{64+k}, v{80+k}")
    a(f"""
    v_lshrrev_b32 v8, 5, v0
    v_lshlrev_b32 v8, 9, v8
    v_lshl_add_u32 v8, v4, 6, v8
    v_add_u32 v8, {SCR}, v8
    v_and_b32 v9, 31, v0
    v_cmp_gt_u32 vcc, 8, v9
    s_and_saveexec_b64 s[36:37], vcc
    ds_write_b128 v8, v[64:67] offset:0
    ds_write_b128 v8, v[68:71] offset:16
    ds_write_b128 v8, v[72:75] offset:32
    ds_write_b128 v8, v[76:79] offset:48
    s_mov_b64 exec, s[36:37]
    s_waitcnt lgkmcnt(0)
{name}_ln_skip1:
    s_barrier
    """)
    stamp(a, 8)
    a(f"""
    s_cmp_lg_u32 s30, 0
    s_cbranch_scc1 {name}_ln_skip2
    v_lshrrev_b32 v8, 3, v0
    v_lshlrev_b32 v8, 6, v8
    v_and_b32 v9, 7, v0
    v_lshl_add_u32 v8, v9, 2, v8
    v_add_u32 v8, {SCR}, v8
    """)
    for p in range(16):
        a(f"ds_read_b32 v{104+p}, v8 offset:{512*p}")
        a(f"ds_read_b32 v{120+p}, v8 offset:{512*p + 32}")
    a("s_waitcnt lgkmcnt(0)")
    for st in (8, 4, 2, 1):
        for k in range(st):
            a(f"v_add_f32 v{104+k}, v{104+k}, v{104+k+st}")
            a(f"v_add_f32 v{120+k}, v{120+k}, v{120+k+st}")
    a(f"""
    s_mov_b32 s36, 0x3b000000
    s_mov_b32 s37, 0x3727c5ac
    v_mul_f32 v104, s36, v104
    v_mul_f32 v120, s36, v120
    v_fma_f32 v120, -v104, v104, v120
    v_max_f32 v120, 0, v120
    v_cvt_pk_bf16_f32 v104, v104, v120
    v_and_b32 v120, 0xffff0000, v104
    v_lshlrev_b32 v104, 16, v104
    v_add_f32 v120, s37, v120
    v_cvt_pk_bf16_f32 v120, v120, v120
    v_lshlrev_b32 v120, 16, v120
    v_sqrt_f32 v120, v120
    s_nop 0
    v_cvt_pk_bf16_f32 v120, v120, v120
    v_lshlrev_b32 v120, 16, v120
    v_rcp_f32 v120, v120
    v_lshlrev_b32 v8, 2, v0
    v_add_u32 v8, {FIN}, v8
    ds_write_b32 v8, v104 offset:0
    ds_write_b32 v8, v120 offset:256
    s_waitcnt lgkmcnt(0)
{name}_ln_skip2:
    s_barrier
    """)
    stamp(a, 9)
    a(f"""
    s_cmp_ge_u32 s30, 8
    s_cbranch_scc1 {name}_ln_skip3
    v_lshlrev_b32 v8, 5, v4
    v_add_u32 v8, {FIN}, v8
    ds_read_b128 v[64:67], v8 offset:0
    ds_read_b128 v[68:71], v8 offset:16
    ds_read_b128 v[72:75], v8 offset:256
    ds_read_b128 v[76:79], v8 offset:272
    v_bfe_u32 v8, v5, 1, 1
    v_lshrrev_b32 v9, 2, v4
    v_xor_b32 v8, v8, v9
    v_lshlrev_b32 v8, 6, v8
    v_and_b32 v9, 3, v4
    v_lshl_add_u32 v8, v9, 4, v8
    v_and_b32 v9, 31, v5
    v_lshl_add_u32 v7, v9, 7, v8
    s_waitcnt lgkmcnt(0)
{name}_ln_skip3:
    v_and_b32 v8, 63, v0              ; l
    v_bfe_u32 v9, v8, 4, 1            ; part / g%2
    v_lshrrev_b32 v10, 5, v8          ; kg
    v_bfe_u32 v11, v8, 2, 2           ; rr
    v_and_b32 v12, 3, v8              ; c4
    v_lshl_add_u32 v13, v10, 3, v11
    v_mul_u32_u24 v14, 352, v13
    v_mul_u32_u24 v15, {UPOFF}, v9
    v_add_u32 v14, v14, v15
    v_lshl_add_u32 v14, v12, 3, v14
    s_lshl_b32 s35, s30, 5
    v_add_u32 v4, s35, v14            ; vA
    v_add_u32 v4, {WST}, v4
    v_add_u32 v3, {3*WSZ}, v4
    v_lshlrev_b32 v14, 7, v13
    v_lshl_add_u32 v14, v9, 5, v14
    v_lshl_add_u32 v14, v12, 3, v14
    v_lshrrev_b32 v15, 1, v11         ; rr>>1
    v_lshl_add_u32 v5, v15, 6, v14    ; vB0
    v_xor_b32 v15, 1, v15
    v_lshl_add_u32 v6, v15, 6, v14    ; vB1
    s_lshr_b32 s39, s30, 2
    """)
    def normalize_to(a, st):
        lab = name + f"_nn{st}"
        e = st >> 1
        a(f"s_cmp_lg_u32 s39, {st & 1}")
        a(f"s_cbranch_scc1 {lab}")
        for k in range(4):
            R = 32 + 4*e + k
            a(f"v_lshlrev_b32 v16, 16, v{R}")
            a(f"v_and_b32 v17, 0xffff0000, v{R}")
            a(f"v_pk_add_f32 v[16:17], v[16:17], v[{64+2*k}:{65+2*k}] neg_lo:[0,1] neg_hi:[0,1]")
            a(f"v_cvt_pk_bf16_f32 v18, v16, v17")
            a(f"v_lshlrev_b32 v16, 16, v18")
            a(f"v_and_b32 v17, 0xffff0000, v18")
            a(f"v_pk_mul_f32 v[16:17], v[16:17], v[{72+2*k}:{73+2*k}]")
            a(f"v_cvt_pk_bf16_f32 v{20+k}, v16, v17")
        a(f"ds_write_b128 v7, v[20:23] offset:{URING + 4096*(st % 3)}")
        a(f"{lab}:")
    def normalize(st): normalize_to(a, st)
    normalize(0)
    normalize(1)
    a("s_waitcnt lgkmcnt(0)")
    stamp(a, 2)
    ACC = 128
    for r in range(32):
        a(f"v_mov_b32 v{ACC+r}, 0")
    def reads_to(a, st):
        buf = st % NWB
        areg = 4 if buf < 3 else 3
        base = (buf % 3) * WSZ
        ub = URING + 4096 * (st % 3)
        F = 80 + 24 * (st & 1)
        for ks in range(2):
            for h in range(2):
                a(f"ds_read_b64_tr_b16 v[{F+4*ks+2*h}:{F+1+4*ks+2*h}], v{areg} offset:{base + ks*5632 + h*1408}")
            for tn in range(2):
                for h in range(2):
                    a(f"ds_read_b64_tr_b16 v[{F+8+8*tn+4*ks+2*h}:{F+9+8*tn+4*ks+2*h}], v{5+tn} offset:{ub + ks*2048 + h*512}")
    def reads(st): reads_to(a, st)
    a(f"s_waitcnt vmcnt({2*(PF-1)})")
    a("s_barrier")
    reads(0)
    for st in range(16):
        if st + 1 < 16:
            nout = 2 * max(0, min(st + PF - 1, 15) - (st + 1))
            a(f"s_waitcnt vmcnt({nout}) lgkmcnt(0)")
        else:
            a(f"s_waitcnt lgkmcnt(0)")
        a("s_barrier")
        if st in (0, 1, 8): stamp(a, 3 + (0, 1, 8).index(st))
        sub = Asm()
        if st + 1 < 16:
            reads_to(sub, st + 1)
        if st + PF < 16:
            dma_to(sub, st + PF)
        if st + 2 < 16:
            normalize_to(sub, st + 2)
        fill = sub.lines
        F = 80 + 24 * (st & 1)
        mf = []
        for ks in range(2):
            for tn in range(2):
                mf.append(f"    v_mfma_f32_32x32x16_bf16 v[{ACC+16*tn}:{ACC+16*tn+15}], v[{F+4*ks}:{F+3+4*ks}], v[{F+8+8*tn+4*ks}:{F+11+8*tn+4*ks}], v[{ACC+16*tn}:{ACC+16*tn+15}]")
        cuts = [0, 4, 8, 12, len(fill)]
        for i in range(4):
            a.raw(mf[i])
            for ln in fill[cuts[i]:cuts[i+1]]:
                a.raw(ln)
    a("s_nop 15")
    stamp(a, 6)
    a(f"""
    s_mov_b32 s36, 0xbfb8aa3b         ; -log2e
    v_and_b32 v8, 31, v0
    v_bfe_u32 v9, v0, 5, 1
    s_lshl_b32 s35, s29, 6
    v_add_u32 v8, s35, v8             ; t
    v_mul_u32_u24 v8, {H_PITCH}, v8
    v_lshl_add_u32 v8, v9, 3, v8
    s_lshl_b32 s35, s30, 5
    s_add_u32 s35, s35, s31
    v_add_u32 v8, s35, v8             ; t*pitch + f0*2 + 2*(16w + 4*(l/32))
    s_cmp_eq_u32 s28, 7
    s_cselect_b32 s37, 1, 0
    s_cmp_ge_u32 s30, 9
    s_cselect_b32 s38, 1, 0
    s_and_b32 s37, s37, s38
    """)
    for tn in range(2):
        for jq in range(2):
            O = 16 + 4*tn + 2*jq
            for jj in range(0, 4, 2):
                g0 = ACC + 16*tn + 4*jq + jj
                u0 = g0 + 8
                a(f"v_cvt_pk_bf16_f32 v10, v{g0}, v{g0+1}")
                a(f"v_cvt_pk_bf16_f32 v11, v{u0}, v{u0+1}")
                a(f"v_lshlrev_b32 v12, 16, v10")
                a(f"v_and_b32 v13, 0xffff0000, v10")
                a(f"v_mul_f32 v14, s36, v12")
                a(f"v_mul_f32 v15, s36, v13")
                a(f"v_exp_f32 v14, v14")
                a(f"v_exp_f32 v15, v15")
                a(f"v_lshlrev_b32 v{g0}, 16, v11")
                a(f"v_add_f32 v14, 1.0, v14")
                a(f"v_add_f32 v15, 1.0, v15")
                a(f"v_rcp_f32 v14, v14")
                a(f"v_rcp_f32 v15, v15")
                a(f"v_and_b32 v{g0+1}, 0xffff0000, v11")
                a(f"v_pk_mul_f32 v[12:13], v[12:13], v[14:15]")
                a(f"v_cvt_pk_bf16_f32 v10, v12, v13")
                a(f"v_lshlrev_b32 v12, 16, v10")
                a(f"v_and_b32 v13, 0xffff0000, v10")
                a(f"v_pk_mul_f32 v[12:13], v[12:13], v[{g0}:{g0+1}]")
                a(f"v_cvt_pk_bf16_f32 v{O+jj//2}, v12, v13")
            a("s_cmp_eq_u32 s37, 0")
            lab = a.newlabel(name + "_nz")
            a(f"s_cbranch_scc1 {lab}")
            a(f"v_mov_b32 v{O}, 0")
            a(f"v_mov_b32 v{O+1}, 0")
            a(f"{lab}:")
            if tn == 1 and jq == 0:
                a(f"v_add_u32 v8, {32*H_PITCH}, v8")
            a(f"buffer_store_dwordx2 v[{O}:{O+1}], v8, s[24:27], 0 offen offset:{jq*16}")
    stamp(a, 7)
    a(f"{E}:")
    a("s_endpgm")
    kernel_desc(a, name, 160)
```

```python
from gen_common import *

def gen_gemm2(a, name, xres, final):
    kernel_header(a, name)
    E = name + "_end"
    a(f"""
    s_cmp_ge_u32 s2, 256
    s_cbranch_scc1 {E}
    s_load_dwordx4 s[4:7], s[0:1], 80     ; w2, out
    s_load_dwordx2 s[8:9], s[0:1], 104
    s_lshr_b32 s28, s2, 5             ; nt
    s_and_b32 s29, s2, 31             ; mt
    v_lshrrev_b32 v1, 6, v0
    s_nop 1
    v_readfirstlane_b32 s30, v1
    s_waitcnt lgkmcnt(0)
    """)
    srd(a, 12, 4, 0, 1376 * 512 * 2)
    srd(a, 16, 8, WS_H, 2048 * H_PITCH)
    srd(a, 20, 8, xres, XTSZ)
    if final:
        srd(a, 24, 6, 0, 2 * MB)
    else:
        srd(a, 24, 8, WS_XT2, XTSZ)
        srd(a, 40, 8, WS_ST + 16384, 16384)
    stamp_init(a)
    stamp(a, 0)
    a(f"""
    s_and_b32 s31, s30, 1             ; wm
    s_lshr_b32 s32, s30, 1            ; wn
    ; residual loads: d = d0+32wn+l%32 ; t = t0+32wm+4*(l/32) + 8jq
    v_and_b32 v2, 31, v0
    v_bfe_u32 v3, v0, 5, 1
    s_lshl_b32 s33, s28, 6
    s_lshl_b32 s34, s32, 5
    s_add_u32 s33, s33, s34
    v_add_u32 v4, s33, v2             ; d
    v_mul_u32_u24 v4, {XTP}, v4
    s_lshl_b32 s33, s29, 6
    s_lshl_b32 s34, s31, 5
    s_add_u32 s33, s33, s34
    s_lshl_b32 s33, s33, 1
    v_lshl_add_u32 v4, v3, 3, v4
    v_add_u32 v4, s33, v4
    buffer_load_dwordx2 v[40:41], v4, s[20:23], 0 offen
    buffer_load_dwordx2 v[42:43], v4, s[20:23], 0 offen offset:16
    buffer_load_dwordx2 v[44:45], v4, s[20:23], 0 offen offset:32
    buffer_load_dwordx2 v[46:47], v4, s[20:23], 0 offen offset:48
    v_lshrrev_b32 v5, 3, v0           ; row / k (0..31)
    v_and_b32 v6, 7, v0               ; cpos
    v_bfe_u32 v7, v5, 1, 3
    v_xor_b32 v7, v7, v6              ; c for A
    s_lshl_b32 s33, s29, 6
    v_add_u32 v8, s33, v5
    v_mul_u32_u24 v8, {H_PITCH}, v8
    v_lshl_add_u32 v8, v7, 4, v8      ; vA0
    v_add_u32 v9, {32*H_PITCH}, v8    ; vA1
    v_bfe_u32 v7, v5, 1, 1
    v_lshlrev_b32 v7, 2, v7
    v_xor_b32 v7, v7, v6              ; c for B
    v_lshlrev_b32 v10, 10, v5
    v_lshl_add_u32 v10, v7, 4, v10
    s_lshl_b32 s33, s28, 7
    v_add_u32 v10, s33, v10           ; vB0
    v_add_u32 v11, 0x8000, v10        ; vB1
    s_lshl_b32 s35, s30, 10
    s_lshr_b32 s47, s2, 3             ; rot = (wg>>3) % 22  (0..31)
    s_sub_u32 s48, s47, 22
    s_cmp_ge_u32 s47, 22
    s_cselect_b32 s47, s48, s47
    """)
    NB = 9
    PF = 8
    def dma(st):
        b = (st % NB) * 16384
        a(f"s_add_u32 s36, s35, {b}")
        a("s_mov_b32 m0, s36")
        a(f"s_mov_b32 s37, {st*128}")
        a("buffer_load_dwordx4 v8, s[16:19], s37 offen lds")
        a(f"s_add_u32 m0, s36, 4096")
        a(f"s_mov_b32 s38, {st*65536}")
        a("buffer_load_dwordx4 v9, s[16:19], s37 offen lds")
        a(f"s_add_u32 m0, s36, 8192")
        a("s_nop 0")
        a("buffer_load_dwordx4 v10, s[12:15], s38 offen lds")
        a(f"s_add_u32 m0, s36, 12288")
        a("s_nop 0")
        a("buffer_load_dwordx4 v11, s[12:15], s38 offen lds")
    for st in range(PF):
        dma(st)
    a(f"""
    v_and_b32 v12, 63, v0             ; l
    v_and_b32 v13, 31, v12            ; i
    v_lshrrev_b32 v14, 5, v12         ; kg
    s_lshl_b32 s33, s31, 5
    v_add_u32 v13, s33, v13           ; row
    v_bfe_u32 v15, v13, 1, 3          ; f
    v_lshlrev_b32 v13, 7, v13
    """)
    for ks in range(4):
        a(f"v_add_u32 v16, {2*ks}, v14")
        a(f"v_xor_b32 v16, v16, v15")
        a(f"v_lshl_add_u32 v{20+ks}, v16, 4, v13")
    a(f"""
    v_bfe_u32 v13, v12, 4, 1          ; sub
    v_bfe_u32 v15, v12, 2, 2          ; rr
    v_and_b32 v16, 3, v12             ; c4
    v_lshl_add_u32 v17, v14, 3, v15
    v_lshlrev_b32 v17, 7, v17
    v_lshl_add_u32 v17, v13, 5, v17
    v_lshl_add_u32 v17, v16, 3, v17
    v_lshrrev_b32 v15, 1, v15
    v_xor_b32 v15, s32, v15
    v_lshl_add_u32 v24, v15, 6, v17
    v_add_u32 v24, 0x2000, v24        ; vB
    """)
    for k in range(5):
        a(f"v_add_u32 v{26+k}, {49152}, v{20+k}")
        a(f"v_add_u32 v{32+k}, {98304}, v{20+k}")
    ACC = 64
    for r in range(16):
        a(f"v_mov_b32 v{ACC+r}, 0")
    NS = 22
    for st in range(NS):
        b = (st % NB) * 16384
        rem = min(PF - 1, NS - 1 - st)
        a(f"s_waitcnt vmcnt({4*rem})")
        a("s_barrier")
        if st in (0, 1, 2, 8, 16): stamp(a, 1 + (0, 1, 2, 8, 16).index(st))
        if st + PF < NS:
            dma(st + PF)
        hb = b // 49152
        bo = b % 49152
        for ks in range(4):
            a(f"ds_read_b128 v[{80+4*ks}:{83+4*ks}], v{(20,26,32)[hb]+ks} offset:{bo}")
            for h in range(2):
                a(f"ds_read_b64_tr_b16 v[{96+4*ks+2*h}:{97+4*ks+2*h}], v{(24,30,36)[hb]} offset:{bo + ks*2048 + h*512}")
        for ks in range(4):
            a(f"s_waitcnt lgkmcnt({3*(3-ks)})")
            a(f"v_mfma_f32_32x32x16_bf16 v[{ACC}:{ACC+15}], v[{80+4*ks}:{83+4*ks}], v[{96+4*ks}:{99+4*ks}], v[{ACC}:{ACC+15}]")
    a("s_nop 15")
    a("s_barrier")
    stamp(a, 6)
    TP = 144
    a(f"""
    v_and_b32 v12, 31, v0
    v_bfe_u32 v13, v0, 5, 1
    s_lshl_b32 s33, s31, 5
    v_lshl_add_u32 v14, v13, 2, s33
    v_mul_u32_u24 v14, {TP}, v14
    s_lshl_b32 s33, s32, 5
    v_add_u32 v12, s33, v12
    v_lshl_add_u32 v14, v12, 1, v14
    """)
    for jq in range(4):
        for jj in range(0, 4, 2):
            r = ACC + 4*jq + jj
            x = 40 + 2*jq + jj//2
            a(f"v_cvt_pk_bf16_f32 v16, v{r}, v{r+1}")
            a(f"v_lshlrev_b32 v17, 16, v16")
            a(f"v_and_b32 v18, 0xffff0000, v16")
            a(f"v_lshlrev_b32 v19, 16, v{x}")
            a(f"v_and_b32 v16, 0xffff0000, v{x}")
            a(f"v_add_f32 v17, v17, v19")
            a(f"v_add_f32 v18, v18, v16")
            a(f"v_cvt_pk_bf16_f32 v{x}, v17, v18")
            a(f"ds_write_b16 v14, v{x} offset:{(8*jq+jj)*TP}")
            a(f"ds_write_b16_d16_hi v14, v{x} offset:{(8*jq+jj+1)*TP}")
        if not final:
            a(f"buffer_store_dwordx2 v[{40+2*jq}:{41+2*jq}], v4, s[24:27], 0 offen offset:{16*jq}")
    a(f"""
    s_waitcnt lgkmcnt(0)
    s_barrier
    v_lshrrev_b32 v12, 2, v0          ; row
    v_and_b32 v13, 3, v0              ; qd
    v_mul_u32_u24 v14, {TP}, v12
    v_lshl_add_u32 v14, v13, 5, v14
    ds_read_b128 v[48:51], v14
    ds_read_b128 v[52:55], v14 offset:16
    s_lshl_b32 s33, s29, 6
    v_add_u32 v12, s33, v12           ; t
    s_waitcnt lgkmcnt(0)
    """)
    if final:
        a(f"""
    v_lshlrev_b32 v12, 10, v12
    v_lshl_add_u32 v12, v13, 5, v12
    s_lshl_b32 s33, s28, 7
    v_add_u32 v12, s33, v12
    buffer_store_dwordx4 v[48:51], v12, s[24:27], 0 offen
    buffer_store_dwordx4 v[52:55], v12, s[24:27], 0 offen offset:16
    """)
    else:
        a("v_mov_b32 v62, 0")
        a("v_mov_b32 v63, 0")
        for k in range(8):
            a(f"v_lshlrev_b32 v16, 16, v{48+k}")
            a(f"v_and_b32 v17, 0xffff0000, v{48+k}")
            a("v_add_f32 v62, v62, v16")
            a("v_fma_f32 v63, v16, v16, v63")
            a("v_add_f32 v62, v62, v17")
            a("v_fma_f32 v63, v17, v17, v63")
        for off in (0x041F, 0x081F):
            a(f"ds_swizzle_b32 v16, v62 offset:{hex(off)}")
            a(f"ds_swizzle_b32 v17, v63 offset:{hex(off)}")
            a("s_waitcnt lgkmcnt(0)")
            a("v_add_f32 v62, v62, v16")
            a("v_add_f32 v63, v63, v17")
        a(f"""
    v_lshlrev_b32 v12, 3, v12
    v_cmp_eq_u32 vcc, 0, v13
    s_and_saveexec_b64 s[44:45], vcc
    buffer_atomic_add_f32 v62, v12, s[40:43], 0 offen
    buffer_atomic_add_f32 v63, v12, s[40:43], 0 offen offset:4
    """)
    a("s_mov_b64 exec, -1")
    stamp(a, 7)
    a(f"{E}:")
    a("s_endpgm")
    kernel_desc(a, name, 128)
G2_LDS = 9 * 16384
```

```python
from gen_common import *

def exp_acc(a, dst, x, t, r):
    a(f"v_mul_f32 v{t}, s60, v{x}")
    a(f"v_fma_f32 v{r}, v{x}, s60, -v{t}")
    a(f"v_fma_f32 v{r}, v{x}, s61, v{r}")
    a(f"v_exp_f32 v{dst}, v{t}")
    a(f"v_mul_f32 v{r}, s62, v{r}")
    a(f"v_fma_f32 v{dst}, v{dst}, v{r}, v{dst}")

def bf16_round(a, v):
    a(f"v_cvt_pk_bf16_f32 v{v}, v{v}, v{v}")
    a(f"v_lshlrev_b32 v{v}, 16, v{v}")

def phi(a, tile, dst, i, t1, t2):
    if tile == 0:
        a(f"v_lshrrev_b32 v{t1}, 3, v{i}")
        a(f"v_lshlrev_b32 v{t1}, 7, v{t1}")
        a(f"v_and_b32 v{t2}, 7, v{i}")
        a(f"v_or_b32 v{dst}, v{t1}, v{t2}")
    elif tile == 1:
        a(f"v_lshrrev_b32 v{t1}, 2, v{i}")
        a(f"v_lshlrev_b32 v{t1}, 7, v{t1}")
        a(f"v_and_b32 v{t2}, 3, v{i}")
        a(f"v_lshlrev_b32 v{t2}, 1, v{t2}")
        a(f"v_add3_u32 v{dst}, v{t1}, v{t2}, s63")
        a(f"v_lshrrev_b32 v{t1}, 1, v{i}")
        a(f"v_lshlrev_b32 v{t1}, 7, v{t1}")
        a(f"v_and_b32 v{t2}, 1, v{i}")
        a(f"v_lshlrev_b32 v{t2}, 2, v{t2}")
        a(f"v_add_u32 v{t1}, v{t1}, v{t2}")
        a(f"v_cmp_lt_u32 vcc, 7, v{i}")
        a("s_nop 1")
        a(f"v_cndmask_b32 v{dst}, v{dst}, v{t1}, vcc")
    else:
        a(f"v_lshlrev_b32 v{t1}, 7, v{i}")
        a(f"v_add_u32 v{dst}, 0x400, v{t1}")

def gen_prep(a):
    name = "prep_kernel"
    kernel_header(a, name)
    a("""
    s_cmp_ge_u32 s2, 640
    s_cbranch_scc1 prep_end
    s_load_dwordx2 s[4:5], s[0:1], 0
    s_load_dwordx4 s[8:11], s[0:1], 8
    s_load_dwordx4 s[12:15], s[0:1], 24
    s_load_dwordx2 s[16:17], s[0:1], 40
    s_load_dwordx2 s[18:19], s[0:1], 104
    s_waitcnt lgkmcnt(0)
    s_cmp_lt_u32 s2, 128
    s_cbranch_scc1 prep_ln
    s_sub_u32 s20, s2, 128
    """)
    stamp_init(a)
    stamp(a, 0)
    srd(a, 24, 8, 0, 131072)
    srd(a, 28, 10, 0, 131072)
    srd(a, 32, 12, 0, 131072)
    srd(a, 36, 14, 0, 131072)
    srd(a, 40, 16, 0, 1024)
    srd(a, 44, 18, WS_KT, 512 * KT_PITCH)
    a("""
    s_mov_b32 s60, 0x3fb8aa3b
    s_mov_b32 s61, 0x32a57060
    s_mov_b32 s62, 0x3f317218
    s_mov_b32 s63, 256
    v_and_b32 v1, 127, v0
    s_lshl_b32 s21, s20, 8
    v_lshlrev_b32 v2, 1, v1
    v_add_u32 v2, s21, v2
    buffer_load_ushort v3, v2, s[24:27], 0 offen
    buffer_load_ushort v4, v2, s[28:31], 0 offen
    buffer_load_ushort v5, v2, s[32:35], 0 offen
    buffer_load_ushort v6, v2, s[36:39], 0 offen
    s_lshl_b32 s21, s20, 1
    v_mov_b32 v7, s21
    buffer_load_ushort v7, v7, s[40:43], 0 offen
    s_waitcnt vmcnt(0)
    v_lshlrev_b32 v3, 16, v3
    v_lshlrev_b32 v4, 16, v4
    v_lshlrev_b32 v5, 16, v5
    v_lshlrev_b32 v6, 16, v6
    v_lshlrev_b32 v7, 16, v7
    """)
    exp_acc(a, 8, 7, 12, 13)
    bf16_round(a, 8)
    exp_acc(a, 9, 3, 12, 13)
    bf16_round(a, 9)
    a("""
    v_mul_f32 v9, v9, v8          ; eA*dt
    v_mul_f32 v4, v4, v8          ; a_i
    v_mul_f32 v5, v5, v8          ; Cr'
    v_mul_f32 v6, v6, v8          ; Ci'
    v_mul_f32 v20, s60, v9
    v_sub_f32 v20, 0, v20
    v_mul_f32 v21, 0.15915494, v4 ; wi
    v_add_f32 v22, v5, v5
    v_add_f32 v23, v6, v6
    v_lshlrev_b32 v2, 4, v1
    ds_write_b128 v2, v[20:23]
    v_and_b32 v10, 15, v0         ; i
    v_bfe_u32 v11, v0, 4, 2       ; kq
    v_lshrrev_b32 v12, 6, v0      ; wave
    v_lshlrev_b32 v12, 9, v12     ; 512*w
    v_lshl_add_u32 v12, v11, 4, v12
    v_lshlrev_b32 v13, 3, v10
    v_cvt_f32_u32 v13, v13        ; pB
    """)
    for T in range(3):
        phi(a, T, 14 + T, 10, 18, 19)
        a(f"v_cvt_f32_u32 v{14+T}, v{14+T}")
    for r in range(12):
        a(f"v_mov_b32 v{40+r}, 0")
    a("s_waitcnt lgkmcnt(0)")
    a("s_barrier")
    stamp(a, 1)
    def entry(p, er_, ei_):
        a(f"v_mul_f32 v32, v20, v{p}")
        a(f"v_exp_f32 v32, v32")
        a(f"v_mul_f32 v33, v21, v{p}")
        a(f"v_fract_f32 v33, v33")
        a(f"v_sin_f32 v34, v33")
        a(f"v_cos_f32 v35, v33")
        a("s_nop 0")
        a(f"v_mul_f32 v{er_}, v32, v35")
        a(f"v_mul_f32 v{ei_}, v32, v34")
    for s in range(8):
        a(f"ds_read_b128 v[20:23], v12 offset:{64*s}")
        a("s_waitcnt lgkmcnt(0)")
        entry(13, 24, 25)
        for T in range(3):
            entry(14 + T, 26, 27)
            a("v_mul_f32 v28, v22, v26")
            a("v_fma_f32 v28, -v23, v27, v28")
            a("v_mul_f32 v29, v22, v27")
            a("v_fma_f32 v29, -v23, v26, -v29")
            a("s_nop 1")
            a(f"v_mfma_f32_16x16x4_f32 v[{40+4*T}:{43+4*T}], v28, v24, v[{40+4*T}:{43+4*T}]")
            a(f"v_mfma_f32_16x16x4_f32 v[{40+4*T}:{43+4*T}], v29, v25, v[{40+4*T}:{43+4*T}]")
    a("s_nop 15")
    a("s_nop 7")
    stamp(a, 2)
    a("""
    v_lshrrev_b32 v12, 6, v0
    v_mul_u32_u24 v12, 3072, v12
    v_and_b32 v18, 63, v0
    v_lshl_add_u32 v12, v18, 2, v12
    """)
    for r in range(12):
        a(f"ds_write_b32 v12, v{40+r} offset:{2048 + 256*r}")
    a("s_waitcnt lgkmcnt(0)")
    a("s_barrier")
    a("""
    v_lshrrev_b32 v12, 6, v0          ; r
    v_and_b32 v18, 63, v0             ; lane
    v_lshlrev_b32 v19, 8, v12
    v_lshl_add_u32 v19, v18, 2, v19   ; r*256 + lane*4
    v_lshrrev_b32 v30, 4, v18
    v_lshl_add_u32 v30, v30, 2, v12
    v_and_b32 v31, 15, v18
    v_lshlrev_b32 v31, 3, v31         ; 8*col
    """)
    for T in range(3):
        for w in range(4):
            a(f"ds_read_b32 v{32+w}, v19 offset:{2048 + 3072*w + 1024*T}")
        phi(a, T, 36, 30, 37, 38)
        a("v_add_u32 v36, v36, v31")
        a("v_lshlrev_b32 v36, 2, v36")
        a("s_waitcnt lgkmcnt(0)")
        a("v_add_f32 v32, v32, v33")
        a("v_add_f32 v34, v34, v35")
        a("v_add_f32 v32, v32, v34")
        a("ds_write_b32 v36, v32 offset:14336")
    a("s_waitcnt lgkmcnt(0)")
    a("s_barrier")
    stamp(a, 3)
    a("s_mul_i32 s21, s20, 9216")
    for rnd in range(2):
        if rnd == 1:
            a("v_cmp_gt_u32 vcc, 32, v0")
            a("s_and_saveexec_b64 s[64:65], vcc")
            a("s_cbranch_execz prep_kdone")
        a(f"v_lshlrev_b32 v12, 3, v0")
        a(f"v_add_u32 v12, {hex((2048*rnd - 120) & 0xffffffff)}, v12")
        for e in range(8):
            a(f"v_add_u32 v{50+e}, {e}, v12")
            a(f"v_cmp_gt_u32 vcc, 0x800, v{50+e}")
            a("s_nop 1")
            a(f"v_cndmask_b32 v{60+e}, 0, 1.0, vcc")
            a(f"v_cndmask_b32 v{50+e}, 0, v{50+e}, vcc")
            a(f"v_cvt_f32_u32 v{50+e}, v{50+e}")
        for e in range(0, 8, 2):
            a(f"v_cvt_pk_bf16_f32 v{50+e}, v{50+e}, v{51+e}")
            a(f"v_and_b32 v{51+e}, 0xffff0000, v{50+e}")
            a(f"v_lshlrev_b32 v{50+e}, 16, v{50+e}")
        for e in range(8):
            a(f"v_cvt_u32_f32 v{50+e}, v{50+e}")
            a(f"v_lshlrev_b32 v{50+e}, 2, v{50+e}")
            a(f"ds_read_b32 v{50+e}, v{50+e} offset:14336")
        a("s_waitcnt lgkmcnt(0)")
        for e in range(8):
            a(f"v_mul_f32 v{50+e}, v{50+e}, v{60+e}")
        for e in range(0, 8, 2):
            a(f"v_cvt_pk_bf16_f32 v{70+e//2}, v{50+e}, v{51+e}")
            a(f"v_lshlrev_b32 v60, 16, v{70+e//2}")
            a(f"v_and_b32 v61, 0xffff0000, v{70+e//2}")
            a(f"v_sub_f32 v60, v{50+e}, v60")
            a(f"v_sub_f32 v61, v{51+e}, v61")
            a(f"v_cvt_pk_bf16_f32 v{74+e//2}, v60, v61")
        a(f"v_lshlrev_b32 v12, 4, v0")
        a(f"v_add_u32 v12, s21, v12")
        if rnd == 1:
            a("v_add_u32 v12, 0x1000, v12")
        a("buffer_store_dwordx4 v[70:73], v12, s[44:47], 0 offen")
        a("v_add_u32 v12, 4608, v12")
        a("buffer_store_dwordx4 v[74:77], v12, s[44:47], 0 offen")
    a("prep_kdone:")
    a("s_mov_b64 exec, -1")
    stamp(a, 4)
    a("s_endpgm")
    a("prep_ln:")
    srd(a, 24, 4, 0, 2048 * 512 * 2)
    srd(a, 28, 18, WS_XT0, XTSZ)
    srd(a, 32, 18, WS_ST, 32768)
    a("""
    s_lshl_b32 s21, s2, 4             ; t0
    v_lshrrev_b32 v1, 4, v0           ; r
    v_and_b32 v2, 15, v0              ; c
    v_add_u32 v3, s21, v1             ; t
    v_lshlrev_b32 v3, 10, v3
    v_lshl_add_u32 v3, v2, 4, v3      ; t*1024 + c*16
    buffer_load_dwordx4 v[8:11], v3, s[24:27], 0 offen
    buffer_load_dwordx4 v[12:15], v3, s[24:27], 0 offen offset:256
    buffer_load_dwordx4 v[16:19], v3, s[24:27], 0 offen offset:512
    buffer_load_dwordx4 v[20:23], v3, s[24:27], 0 offen offset:768
    v_mul_u32_u24 v4, 1040, v1
    v_lshl_add_u32 v4, v2, 4, v4
    v_mov_b32 v6, 0
    v_mov_b32 v7, 0
    s_waitcnt vmcnt(0)
    ds_write_b128 v4, v[8:11]
    ds_write_b128 v4, v[12:15] offset:256
    ds_write_b128 v4, v[16:19] offset:512
    ds_write_b128 v4, v[20:23] offset:768
    """)
    for k in range(16):
        a(f"v_lshlrev_b32 v24, 16, v{8+k}")
        a(f"v_and_b32 v25, 0xffff0000, v{8+k}")
        a("v_add_f32 v6, v6, v24")
        a("v_fma_f32 v7, v24, v24, v7")
        a("v_add_f32 v6, v6, v25")
        a("v_fma_f32 v7, v25, v25, v7")
    for off in (0x041F, 0x081F, 0x101F, 0x201F):
        a(f"ds_swizzle_b32 v24, v6 offset:{hex(off)}")
        a(f"ds_swizzle_b32 v25, v7 offset:{hex(off)}")
        a("s_waitcnt lgkmcnt(0)")
        a("v_add_f32 v6, v6, v24")
        a("v_add_f32 v7, v7, v25")
    a("""
    v_add_u32 v3, s21, v1
    v_lshlrev_b32 v3, 3, v3
    v_mov_b32 v24, 0
    v_mov_b32 v25, 0
    v_cmp_eq_u32 vcc, 0, v2
    s_and_saveexec_b64 s[64:65], vcc
    buffer_store_dwordx2 v[6:7], v3, s[32:35], 0 offen
    v_add_u32 v3, 0x4000, v3
    buffer_store_dwordx2 v[24:25], v3, s[32:35], 0 offen
    s_mov_b64 exec, s[64:65]
    s_waitcnt lgkmcnt(0)
    s_barrier
    v_lshlrev_b32 v4, 2, v0
    """)
    for r in range(16):
        a(f"ds_read_b32 v{8+r}, v4 offset:{1040*r}")
    a("s_mov_b32 s60, 0x05040100")
    a("s_mov_b32 s61, 0x07060302")
    a("s_waitcnt lgkmcnt(0)")
    for k in range(8):
        a(f"v_perm_b32 v{24+k}, v{9+2*k}, v{8+2*k}, s60")
        a(f"v_perm_b32 v{32+k}, v{9+2*k}, v{8+2*k}, s61")
    a(f"""
    v_mul_u32_u24 v4, {2*XTP}, v0
    s_lshl_b32 s21, s2, 5             ; t0*2
    v_add_u32 v4, s21, v4
    buffer_store_dwordx4 v[24:27], v4, s[28:31], 0 offen
    buffer_store_dwordx4 v[28:31], v4, s[28:31], 0 offen offset:16
    v_add_u32 v4, {XTP}, v4
    buffer_store_dwordx4 v[32:35], v4, s[28:31], 0 offen
    buffer_store_dwordx4 v[36:39], v4, s[28:31], 0 offen offset:16
    """)
    a("prep_end:")
    a("s_endpgm")
    kernel_desc(a, name, 80)
```

```python
import sys
from gen_common import *
from gen_k0 import gen_prep
from gen_conv import gen_conv
from gen_g1 import gen_gemm1, G1_LDS
from gen_g2 import gen_gemm2, G2_LDS

def build():
    a = Asm()
    L = []
    L.append("; @launch kernel=prep_kernel grid=(640,1,1) block=(256,1,1) lds=26624")
    L.append("; @launch kernel=conv1_kernel grid=(512,1,1) block=(256,1,1) lds=48416")
    L.append(f"; @launch kernel=gemm1a_kernel grid=(256,1,1) block=(704,1,1) lds={G1_LDS}")
    L.append(f"; @launch kernel=gemm2a_kernel grid=(256,1,1) block=(256,1,1) lds={G2_LDS}")
    L.append("; @launch kernel=conv2_kernel grid=(512,1,1) block=(256,1,1) lds=48416")
    L.append(f"; @launch kernel=gemm1b_kernel grid=(256,1,1) block=(704,1,1) lds={G1_LDS}")
    L.append(f"; @launch kernel=gemm2b_kernel grid=(256,1,1) block=(256,1,1) lds={G2_LDS}")
    hdr = "\n".join(L) + "\n"
    a.raw('.amdgcn_target "amdgcn-amd-amdhsa--gfx950"')
    a.raw(".text")
    gen_prep(a)
    gen_conv(a, "conv1_kernel", WS_XT0, WS_XT1, 0)
    gen_gemm1(a, "gemm1a_kernel", WS_XT1)
    gen_gemm2(a, "gemm2a_kernel", WS_XT1, False)
    gen_conv(a, "conv2_kernel", WS_XT2, WS_XT3, 1)
    gen_gemm1(a, "gemm1b_kernel", WS_XT3)
    gen_gemm2(a, "gemm2b_kernel", WS_XT3, True)
    return hdr + a.text()

if __name__ == "__main__":
    out = sys.argv[1]
    if len(sys.argv) > 2:
        import gen_common
        gen_common.STAMP = True
    open(out, "w").write(build())
```

```python
from gen_common import *

def exp_acc(a, dst, x, t, r):
    a(f"v_mul_f32 v{t}, s60, v{x}")
    a(f"v_fma_f32 v{r}, v{x}, s60, -v{t}")
    a(f"v_fma_f32 v{r}, v{x}, s61, v{r}")
    a(f"v_exp_f32 v{dst}, v{t}")
    a(f"v_mul_f32 v{r}, s62, v{r}")
    a(f"v_fma_f32 v{dst}, v{dst}, v{r}, v{dst}")

def bf16_round(a, v):
    a(f"v_cvt_pk_bf16_f32 v{v}, v{v}, v{v}")
    a(f"v_lshlrev_b32 v{v}, 16, v{v}")

def phi(a, tile, dst, i, t1, t2):
    if tile == 0:
        a(f"v_lshrrev_b32 v{t1}, 3, v{i}")
        a(f"v_lshlrev_b32 v{t1}, 7, v{t1}")
        a(f"v_and_b32 v{t2}, 7, v{i}")
        a(f"v_or_b32 v{dst}, v{t1}, v{t2}")
    elif tile == 1:
        a(f"v_lshrrev_b32 v{t1}, 2, v{i}")
        a(f"v_lshlrev_b32 v{t1}, 7, v{t1}")
        a(f"v_and_b32 v{t2}, 3, v{i}")
        a(f"v_lshlrev_b32 v{t2}, 1, v{t2}")
        a(f"v_add3_u32 v{dst}, v{t1}, v{t2}, s63")
        a(f"v_lshrrev_b32 v{t1}, 1, v{i}")
        a(f"v_lshlrev_b32 v{t1}, 7, v{t1}")
        a(f"v_and_b32 v{t2}, 1, v{i}")
        a(f"v_lshlrev_b32 v{t2}, 2, v{t2}")
        a(f"v_add_u32 v{t1}, v{t1}, v{t2}")
        a(f"v_cmp_lt_u32 vcc, 7, v{i}")
        a("s_nop 1")
        a(f"v_cndmask_b32 v{dst}, v{dst}, v{t1}, vcc")
    else:
        a(f"v_lshlrev_b32 v{t1}, 7, v{i}")
        a(f"v_add_u32 v{dst}, 0x400, v{t1}")

def gen_prep(a):
    name = "prep_kernel"
    kernel_header(a, name)
    a("""
    s_cmp_ge_u32 s2, 640
    s_cbranch_scc1 prep_end
    s_load_dwordx2 s[4:5], s[0:1], 0
    s_load_dwordx4 s[8:11], s[0:1], 8
    s_load_dwordx4 s[12:15], s[0:1], 24
    s_load_dwordx2 s[16:17], s[0:1], 40
    s_load_dwordx2 s[18:19], s[0:1], 104
    s_waitcnt lgkmcnt(0)
    s_cmp_lt_u32 s2, 128
    s_cbranch_scc1 prep_ln
    s_sub_u32 s20, s2, 128
    """)
    stamp_init(a)
    stamp(a, 0)
    srd(a, 24, 8, 0, 131072)
    srd(a, 28, 10, 0, 131072)
    srd(a, 32, 12, 0, 131072)
    srd(a, 36, 14, 0, 131072)
    srd(a, 40, 16, 0, 1024)
    srd(a, 44, 18, WS_KT, 512 * KT_PITCH)
    a("""
    s_mov_b32 s60, 0x3fb8aa3b
    s_mov_b32 s61, 0x32a57060
    s_mov_b32 s62, 0x3f317218
    s_mov_b32 s63, 256
    v_and_b32 v1, 127, v0
    s_lshl_b32 s21, s20, 8
    v_lshlrev_b32 v2, 1, v1
    v_add_u32 v2, s21, v2
    buffer_load_ushort v3, v2, s[24:27], 0 offen
    buffer_load_ushort v4, v2, s[28:31], 0 offen
    buffer_load_ushort v5, v2, s[32:35], 0 offen
    buffer_load_ushort v6, v2, s[36:39], 0 offen
    s_lshl_b32 s21, s20, 1
    v_mov_b32 v7, s21
    buffer_load_ushort v7, v7, s[40:43], 0 offen
    s_waitcnt vmcnt(0)
    v_lshlrev_b32 v3, 16, v3
    v_lshlrev_b32 v4, 16, v4
    v_lshlrev_b32 v5, 16, v5
    v_lshlrev_b32 v6, 16, v6
    v_lshlrev_b32 v7, 16, v7
    """)
    exp_acc(a, 8, 7, 12, 13)
    bf16_round(a, 8)
    exp_acc(a, 9, 3, 12, 13)
    bf16_round(a, 9)
    a("""
    v_mul_f32 v9, v9, v8          ; eA*dt
    v_mul_f32 v4, v4, v8          ; a_i
    v_mul_f32 v5, v5, v8          ; Cr'
    v_mul_f32 v6, v6, v8          ; Ci'
    v_mul_f32 v20, s60, v9
    v_sub_f32 v20, 0, v20
    v_mul_f32 v21, 0.15915494, v4 ; wi
    v_add_f32 v22, v5, v5
    v_add_f32 v23, v6, v6
    v_lshlrev_b32 v2, 4, v1
    ds_write_b128 v2, v[20:23]
    v_and_b32 v10, 15, v0         ; i
    v_bfe_u32 v11, v0, 4, 2       ; kq
    v_lshrrev_b32 v12, 6, v0      ; wave
    v_lshlrev_b32 v12, 9, v12     ; 512*w
    v_lshl_add_u32 v12, v11, 4, v12
    v_lshlrev_b32 v13, 3, v10
    v_cvt_f32_u32 v13, v13        ; pB
    """)
    for T in range(3):
        phi(a, T, 14 + T, 10, 18, 19)
        a(f"v_cvt_f32_u32 v{14+T}, v{14+T}")
    for r in range(12):
        a(f"v_mov_b32 v{40+r}, 0")
    a("s_waitcnt lgkmcnt(0)")
    a("s_barrier")
    stamp(a, 1)
    def entry(p, er_, ei_):
        a(f"v_mul_f32 v32, v20, v{p}")
        a(f"v_exp_f32 v32, v32")
        a(f"v_mul_f32 v33, v21, v{p}")
        a(f"v_fract_f32 v33, v33")
        a(f"v_sin_f32 v34, v33")
        a(f"v_cos_f32 v35, v33")
        a("s_nop 0")
        a(f"v_mul_f32 v{er_}, v32, v35")
        a(f"v_mul_f32 v{ei_}, v32, v34")
    for s in range(8):
        a(f"ds_read_b128 v[20:23], v12 offset:{64*s}")
        a("s_waitcnt lgkmcnt(0)")
        entry(13, 24, 25)
        for T in range(3):
            entry(14 + T, 26, 27)
            a("v_mul_f32 v28, v22, v26")
            a("v_fma_f32 v28, -v23, v27, v28")
            a("v_mul_f32 v29, v22, v27")
            a("v_fma_f32 v29, -v23, v26, -v29")
            a("s_nop 1")
            a(f"v_mfma_f32_16x16x4_f32 v[{40+4*T}:{43+4*T}], v28, v24, v[{40+4*T}:{43+4*T}]")
            a(f"v_mfma_f32_16x16x4_f32 v[{40+4*T}:{43+4*T}], v29, v25, v[{40+4*T}:{43+4*T}]")
    a("s_nop 15")
    a("s_nop 7")
    stamp(a, 2)
    a("""
    v_lshrrev_b32 v12, 6, v0
    v_mul_u32_u24 v12, 3072, v12
    v_and_b32 v18, 63, v0
    v_lshl_add_u32 v12, v18, 2, v12
    """)
    for r in range(12):
        a(f"ds_write_b32 v12, v{40+r} offset:{2048 + 256*r}")
    a("s_waitcnt lgkmcnt(0)")
    a("s_barrier")
    a("""
    v_lshrrev_b32 v12, 6, v0          ; r
    v_and_b32 v18, 63, v0             ; lane
    v_lshlrev_b32 v19, 8, v12
    v_lshl_add_u32 v19, v18, 2, v19   ; r*256 + lane*4
    v_lshrrev_b32 v30, 4, v18
    v_lshl_add_u32 v30, v30, 2, v12
    v_and_b32 v31, 15, v18
    v_lshlrev_b32 v31, 3, v31         ; 8*col
    """)
    for T in range(3):
        for w in range(4):
            a(f"ds_read_b32 v{32+w}, v19 offset:{2048 + 3072*w + 1024*T}")
        phi(a, T, 36, 30, 37, 38)
        a("v_add_u32 v36, v36, v31")
        a("v_lshlrev_b32 v36, 2, v36")
        a("s_waitcnt lgkmcnt(0)")
        a("v_add_f32 v32, v32, v33")
        a("v_add_f32 v34, v34, v35")
        a("v_add_f32 v32, v32, v34")
        a("ds_write_b32 v36, v32 offset:14336")
    a("s_waitcnt lgkmcnt(0)")
    a("s_barrier")
    stamp(a, 3)
    a("s_mul_i32 s21, s20, 9216")
    for rnd in range(2):
        if rnd == 1:
            a("v_cmp_gt_u32 vcc, 32, v0")
            a("s_and_saveexec_b64 s[64:65], vcc")
            a("s_cbranch_execz prep_kdone")
        a(f"v_lshlrev_b32 v12, 3, v0")
        a(f"v_add_u32 v12, {hex((2048*rnd - 120) & 0xffffffff)}, v12")
        for e in range(8):
            a(f"v_add_u32 v{50+e}, {e}, v12")
            a(f"v_cmp_gt_u32 vcc, 0x800, v{50+e}")
            a("s_nop 1")
            a(f"v_cndmask_b32 v{60+e}, 0, 1.0, vcc")
            a(f"v_cndmask_b32 v{50+e}, 0, v{50+e}, vcc")
            a(f"v_cvt_f32_u32 v{50+e}, v{50+e}")
        for e in range(0, 8, 2):
            a(f"v_cvt_pk_bf16_f32 v{50+e}, v{50+e}, v{51+e}")
            a(f"v_and_b32 v{51+e}, 0xffff0000, v{50+e}")
            a(f"v_lshlrev_b32 v{50+e}, 16, v{50+e}")
        for e in range(8):
            a(f"v_cvt_u32_f32 v{50+e}, v{50+e}")
            a(f"v_lshlrev_b32 v{50+e}, 2, v{50+e}")
            a(f"ds_read_b32 v{50+e}, v{50+e} offset:14336")
        a("s_waitcnt lgkmcnt(0)")
        for e in range(8):
            a(f"v_mul_f32 v{50+e}, v{50+e}, v{60+e}")
        for e in range(0, 8, 2):
            a(f"v_cvt_pk_bf16_f32 v{70+e//2}, v{50+e}, v{51+e}")
            a(f"v_lshlrev_b32 v60, 16, v{70+e//2}")
            a(f"v_and_b32 v61, 0xffff0000, v{70+e//2}")
            a(f"v_sub_f32 v60, v{50+e}, v60")
            a(f"v_sub_f32 v61, v{51+e}, v61")
            a(f"v_cvt_pk_bf16_f32 v{74+e//2}, v60, v61")
        a(f"v_lshlrev_b32 v12, 4, v0")
        a(f"v_add_u32 v12, s21, v12")
        if rnd == 1:
            a("v_add_u32 v12, 0x1000, v12")
        a("buffer_store_dwordx4 v[70:73], v12, s[44:47], 0 offen")
        a("v_add_u32 v12, 4608, v12")
        a("buffer_store_dwordx4 v[74:77], v12, s[44:47], 0 offen")
    a("prep_kdone:")
    a("s_mov_b64 exec, -1")
    stamp(a, 4)
    a("s_endpgm")
    a("prep_ln:")
    srd(a, 24, 4, 0, 2048 * 512 * 2)
    srd(a, 28, 18, WS_XT0, XTSZ)
    srd(a, 32, 18, WS_ST, 32768)
    a("""
    s_lshl_b32 s21, s2, 4             ; t0
    v_lshrrev_b32 v1, 4, v0           ; r
    v_and_b32 v2, 15, v0              ; c
    v_add_u32 v3, s21, v1             ; t
    v_lshlrev_b32 v3, 10, v3
    v_lshl_add_u32 v3, v2, 4, v3      ; t*1024 + c*16
    buffer_load_dwordx4 v[8:11], v3, s[24:27], 0 offen
    buffer_load_dwordx4 v[12:15], v3, s[24:27], 0 offen offset:256
    buffer_load_dwordx4 v[16:19], v3, s[24:27], 0 offen offset:512
    buffer_load_dwordx4 v[20:23], v3, s[24:27], 0 offen offset:768
    v_mul_u32_u24 v4, 1040, v1
    v_lshl_add_u32 v4, v2, 4, v4
    v_mov_b32 v6, 0
    v_mov_b32 v7, 0
    s_waitcnt vmcnt(0)
    ds_write_b128 v4, v[8:11]
    ds_write_b128 v4, v[12:15] offset:256
    ds_write_b128 v4, v[16:19] offset:512
    ds_write_b128 v4, v[20:23] offset:768
    """)
    for k in range(16):
        a(f"v_lshlrev_b32 v24, 16, v{8+k}")
        a(f"v_and_b32 v25, 0xffff0000, v{8+k}")
        a("v_add_f32 v6, v6, v24")
        a("v_fma_f32 v7, v24, v24, v7")
        a("v_add_f32 v6, v6, v25")
        a("v_fma_f32 v7, v25, v25, v7")
    for off in (0x041F, 0x081F, 0x101F, 0x201F):
        a(f"ds_swizzle_b32 v24, v6 offset:{hex(off)}")
        a(f"ds_swizzle_b32 v25, v7 offset:{hex(off)}")
        a("s_waitcnt lgkmcnt(0)")
        a("v_add_f32 v6, v6, v24")
        a("v_add_f32 v7, v7, v25")
    a("""
    v_add_u32 v3, s21, v1
    v_lshlrev_b32 v3, 3, v3
    v_mov_b32 v24, 0
    v_mov_b32 v25, 0
    v_cmp_eq_u32 vcc, 0, v2
    s_and_saveexec_b64 s[64:65], vcc
    buffer_store_dwordx2 v[6:7], v3, s[32:35], 0 offen
    v_add_u32 v3, 0x4000, v3
    buffer_store_dwordx2 v[24:25], v3, s[32:35], 0 offen
    s_mov_b64 exec, s[64:65]
    s_waitcnt lgkmcnt(0)
    s_barrier
    v_lshlrev_b32 v4, 2, v0
    """)
    for r in range(16):
        a(f"ds_read_b32 v{8+r}, v4 offset:{1040*r}")
    a("s_mov_b32 s60, 0x05040100")
    a("s_mov_b32 s61, 0x07060302")
    a("s_waitcnt lgkmcnt(0)")
    for k in range(8):
        a(f"v_perm_b32 v{24+k}, v{9+2*k}, v{8+2*k}, s60")
        a(f"v_perm_b32 v{32+k}, v{9+2*k}, v{8+2*k}, s61")
    a(f"""
    v_mul_u32_u24 v4, {2*XTP}, v0
    s_lshl_b32 s21, s2, 5             ; t0*2
    v_add_u32 v4, s21, v4
    buffer_store_dwordx4 v[24:27], v4, s[28:31], 0 offen
    buffer_store_dwordx4 v[28:31], v4, s[28:31], 0 offen offset:16
    v_add_u32 v4, {XTP}, v4
    buffer_store_dwordx4 v[32:35], v4, s[28:31], 0 offen
    buffer_store_dwordx4 v[36:39], v4, s[28:31], 0 offen offset:16
    """)
    a("""
    s_load_dwordx4 s[40:43], s[0:1], 64
    s_load_dwordx2 s[44:45], s[0:1], 80
    s_waitcnt lgkmcnt(0)
    """)
    srd(a, 48, 40, 0, 1409024)
    srd(a, 52, 42, 0, 1409024)
    srd(a, 56, 44, 0, 1409024)
    a("""
    s_mul_i32 s21, s2, 11008          ; 1409024/128
    v_lshl_add_u32 v4, v0, 4, s21
    """)
    for i, R in enumerate((48, 52, 56)):
        for j in range(3):
            a(f"buffer_load_dwordx4 v[{40+4*((3*i+j)%8)}:{43+4*((3*i+j)%8)}], v4, s[{R}:{R+3}], 0 offen offset:{0}") if j == 0 else None
        a(f"buffer_load_dwordx4 v[{44}:{47}], v4, s[{R}:{R+3}], 0 offen offset:4095") if False else None
    a("v_add_u32 v5, 0x1000, v4")
    a("v_add_u32 v6, 0x2000, v4")
    for R in (48, 52, 56):
        a(f"buffer_load_dwordx4 v[52:55], v5, s[{R}:{R+3}], 0 offen")
        a(f"buffer_load_dwordx4 v[56:59], v6, s[{R}:{R+3}], 0 offen")
    a("s_waitcnt vmcnt(0)")
    a("prep_end:")
    a("s_endpgm")
    kernel_desc(a, name, 80)
```

```python
from gen_common import *

NWB = 6
WSZ = 22784
UPOFF = 11392
URING = 0
SCR = 12288
FIN = SCR + 8192
WST = 21504
G1_LDS = WST + NWB * WSZ

import os
VAR = os.environ.get('G1VAR', '')
def gen_gemm1(a, name, xin):
    kernel_header(a, name)
    E = name + "_end"
    a(f"""
    s_cmp_ge_u32 s2, 256
    s_cbranch_scc1 {E}
    s_load_dwordx4 s[4:7], s[0:1], 64
    s_load_dwordx2 s[8:9], s[0:1], 104
    s_lshr_b32 s28, s2, 5             ; ft
    s_and_b32 s29, s2, 31             ; mt
    v_lshrrev_b32 v1, 6, v0
    s_nop 1
    v_readfirstlane_b32 s30, v1
    s_waitcnt lgkmcnt(0)
    """)
    srd(a, 12, 4, 0, 512 * 1376 * 2)
    srd(a, 16, 6, 0, 512 * 1376 * 2)
    srd(a, 20, 8, xin, XTSZ)
    srd(a, 24, 8, WS_H, 2048 * H_PITCH)
    stamp_init(a)
    stamp(a, 0)
    a(f"""
    ; W DMA lane offsets: k = tid/22, cc = tid%22
    v_mul_u32_u24 v2, 2979, v0
    v_lshrrev_b32 v2, 16, v2          ; k
    v_mul_u32_u24 v3, 22, v2
    v_sub_u32 v3, v0, v3              ; cc
    v_mul_u32_u24 v2, 2752, v2
    v_lshl_add_u32 v2, v3, 4, v2      ; k*2752 + cc*16
    s_mul_i32 s31, s28, 352           ; f0*2
    v_add_u32 v2, s31, v2
    s_lshl_b32 s32, s30, 10           ; wave*1024
    """)
    def dma_to(a, stage):
        buf = stage % NWB
        a(f"s_add_u32 s33, s32, {WST + buf*WSZ}")
        a(f"s_mov_b32 m0, s33")
        a(f"s_mov_b32 s34, {stage * 88064}")
        a(f"buffer_load_dwordx4 v2, s[12:15], s34 offen lds")
        a(f"s_add_u32 m0, s33, {UPOFF}")
        a(f"s_nop 0")
        a(f"buffer_load_dwordx4 v2, s[16:19], s34 offen lds")
    def dma(stage): dma_to(a, stage)
    PF = NWB - 1
    a(f"""
    s_cmp_ge_u32 s30, 8
    s_cbranch_scc1 {name}_ln_dma
    v_and_b32 v4, 7, v0               ; c
    v_lshrrev_b32 v5, 3, v0           ; g (0..63)
    s_lshl_b32 s35, s29, 7            ; t0*2
    v_mul_u32_u24 v6, {XTP}, v5
    v_lshl_add_u32 v6, v4, 4, v6
    v_add_u32 v6, s35, v6
    """)
    for e in range(8):
        a(f"buffer_load_dwordx4 v[{32+4*e}:{35+4*e}], v6, s[20:23], 0 offen")
        if e < 7:
            a(f"v_add_u32 v6, {64*XTP}, v6")
    for k in range(16):
        a(f"v_mov_b32 v{64+k}, 0")
    for e in range(8):
        a(f"s_waitcnt vmcnt({7-e})")
        for k in range(4):
            X = 104 + 8*(e & 1) + 2*k
            a(f"v_lshlrev_b32 v{X}, 16, v{32+4*e+k}")
            a(f"v_and_b32 v{X+1}, 0xffff0000, v{32+4*e+k}")
            a(f"v_pk_add_f32 v[{64+2*k}:{65+2*k}], v[{64+2*k}:{65+2*k}], v[{X}:{X+1}]")
            a(f"v_pk_fma_f32 v[{72+2*k}:{73+2*k}], v[{X}:{X+1}], v[{X}:{X+1}], v[{72+2*k}:{73+2*k}]")
    a(f"s_branch {name}_ln_cont")
    a(f"{name}_ln_dma:")
    a("s_sub_u32 s40, s30, 8")
    a("v_and_b32 v17, 63, v0")
    for i in range(4):
        if i < 3:
            a(f"s_add_u32 s41, s40, {3*i}")
        else:
            a(f"s_add_u32 s41, s40, 9")
            a(f"s_min_u32 s41, s41, 10")
        a(f"s_lshl_b32 s{44+i}, s41, 10")
        a(f"s_lshl_b32 s41, s41, 6")
        a(f"v_add_u32 v18, s41, v17")
        a(f"v_mul_u32_u24 v19, 2979, v18")
        a(f"v_lshrrev_b32 v19, 16, v19")
        a(f"v_mul_u32_u24 v20, 22, v19")
        a(f"v_sub_u32 v20, v18, v20")
        a(f"v_mul_u32_u24 v19, 2752, v19")
        a(f"v_lshl_add_u32 v19, v20, 4, v19")
        a(f"v_add_u32 v{24+i}, s31, v19")
    for st in range(PF):
        for i in range(4):
            a(f"s_add_u32 s33, s{44+i}, {WST + (st % NWB)*WSZ}")
            a(f"s_mov_b32 m0, s33")
            a(f"s_mov_b32 s34, {st * 88064}")
            a(f"buffer_load_dwordx4 v{24+i}, s[12:15], s34 offen lds")
            a(f"s_add_u32 m0, s33, {UPOFF}")
            a(f"s_nop 0")
            a(f"buffer_load_dwordx4 v{24+i}, s[16:19], s34 offen lds")
    a(f"s_branch {name}_ln_skip1")
    a(f"{name}_ln_cont:")
    stamp(a, 1)
    for off in (0x201F, 0x401F):
        for k in range(16):
            a(f"ds_swizzle_b32 v{80+k}, v{64+k} offset:{hex(off)}")
        a("s_waitcnt lgkmcnt(0)")
        for k in range(16):
            a(f"v_add_f32 v{64+k}, v{64+k}, v{80+k}")
    a(f"""
    v_lshrrev_b32 v8, 5, v0
    v_lshlrev_b32 v8, 9, v8
    v_lshl_add_u32 v8, v4, 6, v8
    v_add_u32 v8, {SCR}, v8
    v_and_b32 v9, 31, v0
    v_cmp_gt_u32 vcc, 8, v9
    s_and_saveexec_b64 s[36:37], vcc
    ds_write_b128 v8, v[64:67] offset:0
    ds_write_b128 v8, v[68:71] offset:16
    ds_write_b128 v8, v[72:75] offset:32
    ds_write_b128 v8, v[76:79] offset:48
    s_mov_b64 exec, s[36:37]
    s_waitcnt lgkmcnt(0)
{name}_ln_skip1:
    s_barrier
    """)
    stamp(a, 8)
    a(f"""
    s_cmp_lg_u32 s30, 0
    s_cbranch_scc1 {name}_ln_skip2
    v_lshrrev_b32 v8, 3, v0
    v_lshlrev_b32 v8, 6, v8
    v_and_b32 v9, 7, v0
    v_lshl_add_u32 v8, v9, 2, v8
    v_add_u32 v8, {SCR}, v8
    """)
    for p in range(16):
        a(f"ds_read_b32 v{104+p}, v8 offset:{512*p}")
        a(f"ds_read_b32 v{120+p}, v8 offset:{512*p + 32}")
    a("s_waitcnt lgkmcnt(0)")
    for st in (8, 4, 2, 1):
        for k in range(st):
            a(f"v_add_f32 v{104+k}, v{104+k}, v{104+k+st}")
            a(f"v_add_f32 v{120+k}, v{120+k}, v{120+k+st}")
    a(f"""
    s_mov_b32 s36, 0x3b000000
    s_mov_b32 s37, 0x3727c5ac
    v_mul_f32 v104, s36, v104
    v_mul_f32 v120, s36, v120
    v_fma_f32 v120, -v104, v104, v120
    v_max_f32 v120, 0, v120
    v_cvt_pk_bf16_f32 v104, v104, v120
    v_and_b32 v120, 0xffff0000, v104
    v_lshlrev_b32 v104, 16, v104
    v_add_f32 v120, s37, v120
    v_cvt_pk_bf16_f32 v120, v120, v120
    v_lshlrev_b32 v120, 16, v120
    v_sqrt_f32 v120, v120
    s_nop 0
    v_cvt_pk_bf16_f32 v120, v120, v120
    v_lshlrev_b32 v120, 16, v120
    v_rcp_f32 v120, v120
    v_lshlrev_b32 v8, 2, v0
    v_add_u32 v8, {FIN}, v8
    ds_write_b32 v8, v104 offset:0
    ds_write_b32 v8, v120 offset:256
    s_waitcnt lgkmcnt(0)
{name}_ln_skip2:
    s_barrier
    """)
    stamp(a, 9)
    a(f"""
    s_cmp_ge_u32 s30, 8
    s_cbranch_scc1 {name}_ln_skip3
    v_lshlrev_b32 v8, 5, v4
    v_add_u32 v8, {FIN}, v8
    ds_read_b128 v[64:67], v8 offset:0
    ds_read_b128 v[68:71], v8 offset:16
    ds_read_b128 v[72:75], v8 offset:256
    ds_read_b128 v[76:79], v8 offset:272
    v_bfe_u32 v8, v5, 1, 1
    v_lshrrev_b32 v9, 2, v4
    v_xor_b32 v8, v8, v9
    v_lshlrev_b32 v8, 6, v8
    v_and_b32 v9, 3, v4
    v_lshl_add_u32 v8, v9, 4, v8
    v_and_b32 v9, 31, v5
    v_lshl_add_u32 v7, v9, 7, v8
    s_waitcnt lgkmcnt(0)
{name}_ln_skip3:
    v_and_b32 v8, 63, v0              ; l
    v_bfe_u32 v9, v8, 4, 1            ; part / g%2
    v_lshrrev_b32 v10, 5, v8          ; kg
    v_bfe_u32 v11, v8, 2, 2           ; rr
    v_and_b32 v12, 3, v8              ; c4
    v_lshl_add_u32 v13, v10, 3, v11
    v_mul_u32_u24 v14, 352, v13
    v_mul_u32_u24 v15, {UPOFF}, v9
    v_add_u32 v14, v14, v15
    v_lshl_add_u32 v14, v12, 3, v14
    s_lshl_b32 s35, s30, 5
    v_add_u32 v4, s35, v14            ; vA
    v_add_u32 v4, {WST}, v4
    v_add_u32 v3, {3*WSZ}, v4
    v_lshlrev_b32 v14, 7, v13
    v_lshl_add_u32 v14, v9, 5, v14
    v_lshl_add_u32 v14, v12, 3, v14
    v_lshrrev_b32 v15, 1, v11         ; rr>>1
    v_lshl_add_u32 v5, v15, 6, v14    ; vB0
    v_xor_b32 v15, 1, v15
    v_lshl_add_u32 v6, v15, 6, v14    ; vB1
    s_lshr_b32 s39, s30, 2
    """)
    def normalize_to(a, st, half=None):
        e = st >> 1
        for hf in ((0, 1) if half is None else (half,)):
            lab = name + f"_nn{st}_{hf}"
            a(f"s_cmp_lg_u32 s39, {st & 1}")
            a(f"s_cbranch_scc1 {lab}")
            for k in (2*hf, 2*hf+1):
                R = 32 + 4*e + k
                a(f"v_lshlrev_b32 v16, 16, v{R}")
                a(f"v_and_b32 v17, 0xffff0000, v{R}")
                a(f"v_pk_add_f32 v[16:17], v[16:17], v[{64+2*k}:{65+2*k}] neg_lo:[0,1] neg_hi:[0,1]")
                a(f"v_cvt_pk_bf16_f32 v18, v16, v17")
                a(f"v_lshlrev_b32 v16, 16, v18")
                a(f"v_and_b32 v17, 0xffff0000, v18")
                a(f"v_pk_mul_f32 v[16:17], v[16:17], v[{72+2*k}:{73+2*k}]")
                a(f"v_cvt_pk_bf16_f32 v{20+k}, v16, v17")
            if hf == 1:
                a(f"ds_write_b128 v7, v[20:23] offset:{URING + 4096*(st % 3)}")
            a(f"{lab}:")
    def normalize(st): normalize_to(a, st)
    normalize(0)
    normalize(1)
    a("s_waitcnt lgkmcnt(0)")
    stamp(a, 2)
    ACC = 128
    for r in range(32):
        a(f"v_mov_b32 v{ACC+r}, 0")
    def reads_to(a, st):
        buf = st % NWB
        areg = 4 if buf < 3 else 3
        base = (buf % 3) * WSZ
        ub = URING + 4096 * (st % 3)
        F = 80 + 24 * (st & 1)
        for ks in range(2):
            for h in range(2):
                a(f"ds_read_b64_tr_b16 v[{F+4*ks+2*h}:{F+1+4*ks+2*h}], v{areg} offset:{base + ks*5632 + h*1408}")
            for tn in range(2):
                for h in range(2):
                    a(f"ds_read_b64_tr_b16 v[{F+8+8*tn+4*ks+2*h}:{F+9+8*tn+4*ks+2*h}], v{5+tn} offset:{ub + ks*2048 + h*512}")
    def reads(st): reads_to(a, st)
    def wait2(na, nb, lgk):
        l = " lgkmcnt(0)" if lgk else ""
        lab = a.newlabel(name + "_w")
        a("s_cmp_lt_u32 s30, 8")
        a(f"s_cbranch_scc1 {lab}")
        a(f"s_waitcnt vmcnt({min(nb,63)})")
        a(f"{lab}:")
        a(f"s_waitcnt vmcnt({min(na,63)}){l}") if na is not None else a("s_waitcnt lgkmcnt(0)")
    wait2(None, 8*(PF-1), True)
    a("s_barrier")
    reads(0)
    for st in range(16):
        need = st + 1
        if need < 16:
            last_issued = min(st + PF - 1, 15)
            if need < PF:
                na = None
                nb = 8 * (PF - 1 - need) + 2 * max(0, last_issued - (PF - 1))
            else:
                na = 2 * (last_issued - need)
                nb = na
            wait2(na, nb, True)
        else:
            a(f"s_waitcnt lgkmcnt(0)")
        a("s_barrier")
        if st in (0, 1, 8): stamp(a, 3 + (0, 1, 8).index(st))
        parts = [Asm(), Asm(), Asm(), Asm()]
        if st + 1 < 16:
            reads_to(parts[0], st + 1)
        if st + PF < 16:
            dma_to(parts[0], st + PF)
        if st + 2 < 16:
            normalize_to(parts[1], st + 2, 0)
            normalize_to(parts[2], st + 2, 1)
        F = 80 + 24 * (st & 1)
        mf = []
        for ks in range(2):
            for tn in range(2):
                mf.append(f"    v_mfma_f32_32x32x16_bf16 v[{ACC+16*tn}:{ACC+16*tn+15}], v[{F+4*ks}:{F+3+4*ks}], v[{F+8+8*tn+4*ks}:{F+11+8*tn+4*ks}], v[{ACC+16*tn}:{ACC+16*tn+15}]")
        for i in range(4):
            a.raw(mf[i])
            for ln in parts[i].lines:
                a.raw(ln)
    a("s_nop 15")
    stamp(a, 6)
    a(f"""
    s_mov_b32 s36, 0xbfb8aa3b         ; -log2e
    v_and_b32 v8, 31, v0
    v_bfe_u32 v9, v0, 5, 1
    s_lshl_b32 s35, s29, 6
    v_add_u32 v8, s35, v8             ; t
    v_mul_u32_u24 v8, {H_PITCH}, v8
    v_lshl_add_u32 v8, v9, 3, v8
    s_lshl_b32 s35, s30, 5
    s_add_u32 s35, s35, s31
    v_add_u32 v8, s35, v8             ; t*pitch + f0*2 + 2*(16w + 4*(l/32))
    s_cmp_eq_u32 s28, 7
    s_cselect_b32 s37, 1, 0
    s_cmp_ge_u32 s30, 9
    s_cselect_b32 s38, 1, 0
    s_and_b32 s37, s37, s38
    """)
    for tn in range(2):
        for jq in range(2):
            O = 16 + 4*tn + 2*jq
            for jj in range(0, 4, 2):
                g0 = ACC + 16*tn + 4*jq + jj
                u0 = g0 + 8
                a(f"v_cvt_pk_bf16_f32 v10, v{g0}, v{g0+1}")
                a(f"v_cvt_pk_bf16_f32 v11, v{u0}, v{u0+1}")
                a(f"v_lshlrev_b32 v12, 16, v10")
                a(f"v_and_b32 v13, 0xffff0000, v10")
                a(f"v_mul_f32 v14, s36, v12")
                a(f"v_mul_f32 v15, s36, v13")
                a(f"v_exp_f32 v14, v14")
                a(f"v_exp_f32 v15, v15")
                a(f"v_lshlrev_b32 v{g0}, 16, v11")
                a(f"v_add_f32 v14, 1.0, v14")
                a(f"v_add_f32 v15, 1.0, v15")
                a(f"v_rcp_f32 v14, v14")
                a(f"v_rcp_f32 v15, v15")
                a(f"v_and_b32 v{g0+1}, 0xffff0000, v11")
                a(f"v_pk_mul_f32 v[12:13], v[12:13], v[14:15]")
                a(f"v_cvt_pk_bf16_f32 v10, v12, v13")
                a(f"v_lshlrev_b32 v12, 16, v10")
                a(f"v_and_b32 v13, 0xffff0000, v10")
                a(f"v_pk_mul_f32 v[12:13], v[12:13], v[{g0}:{g0+1}]")
                a(f"v_cvt_pk_bf16_f32 v{O+jj//2}, v12, v13")
            a("s_cmp_eq_u32 s37, 0")
            lab = a.newlabel(name + "_nz")
            a(f"s_cbranch_scc1 {lab}")
            a(f"v_mov_b32 v{O}, 0")
            a(f"v_mov_b32 v{O+1}, 0")
            a(f"{lab}:")
            if tn == 1 and jq == 0:
                a(f"v_add_u32 v8, {32*H_PITCH}, v8")
            a(f"buffer_store_dwordx2 v[{O}:{O+1}], v8, s[24:27], 0 offen offset:{jq*16}")
    stamp(a, 7)
    a(f"{E}:")
    a("s_endpgm")
    kernel_desc(a, name, 160)
```

```python
from gen_common import *

NWB = 4
WSZ = 22784
UPOFF = 11392
URING = 0
WST = 65536
SCR = WST + 3 * WSZ
FIN = SCR + 8192
G1_LDS = WST + NWB * WSZ

import os
VAR = os.environ.get('G1VAR', '')
def gen_gemm1(a, name, xin):
    kernel_header(a, name)
    E = name + "_end"
    a(f"""
    s_cmp_ge_u32 s2, 256
    s_cbranch_scc1 {E}
    s_load_dwordx4 s[4:7], s[0:1], 64
    s_load_dwordx2 s[8:9], s[0:1], 104
    s_lshr_b32 s28, s2, 5             ; ft
    s_and_b32 s29, s2, 31             ; mt
    v_lshrrev_b32 v1, 6, v0
    s_nop 1
    v_readfirstlane_b32 s30, v1
    s_waitcnt lgkmcnt(0)
    """)
    srd(a, 12, 4, 0, 512 * 1376 * 2)
    srd(a, 16, 6, 0, 512 * 1376 * 2)
    srd(a, 20, 8, xin, XTSZ)
    srd(a, 24, 8, WS_H, 2048 * H_PITCH)
    stamp_init(a)
    stamp(a, 0)
    a(f"""
    ; W DMA lane offsets: k = tid/22, cc = tid%22
    v_mul_u32_u24 v2, 2979, v0
    v_lshrrev_b32 v2, 16, v2          ; k
    v_mul_u32_u24 v3, 22, v2
    v_sub_u32 v3, v0, v3              ; cc
    v_mul_u32_u24 v2, 2752, v2
    v_lshl_add_u32 v2, v3, 4, v2      ; k*2752 + cc*16
    s_mul_i32 s31, s28, 352           ; f0*2
    v_add_u32 v2, s31, v2
    s_lshl_b32 s32, s30, 10           ; wave*1024
    """)
    def dma_to(a, stage):
        buf = stage % NWB
        a(f"s_add_u32 s33, s32, {WST + buf*WSZ}")
        a(f"s_mov_b32 m0, s33")
        a(f"s_mov_b32 s34, {stage * 88064}")
        a(f"buffer_load_dwordx4 v2, s[12:15], s34 offen lds")
        a(f"s_add_u32 m0, s33, {UPOFF}")
        a(f"s_nop 0")
        a(f"buffer_load_dwordx4 v2, s[16:19], s34 offen lds")
    def dma(stage): dma_to(a, stage)
    PF = NWB - 1
    a(f"""
    s_cmp_ge_u32 s30, 8
    s_cbranch_scc1 {name}_ln_dma
    v_and_b32 v4, 7, v0               ; c
    v_lshrrev_b32 v5, 3, v0           ; g (0..63)
    s_lshl_b32 s35, s29, 7            ; t0*2
    v_mul_u32_u24 v6, {XTP}, v5
    v_lshl_add_u32 v6, v4, 4, v6
    v_add_u32 v6, s35, v6
    """)
    for e in range(8):
        a(f"buffer_load_dwordx4 v[{32+4*e}:{35+4*e}], v6, s[20:23], 0 offen")
        if e < 7:
            a(f"v_add_u32 v6, {64*XTP}, v6")
    for k in range(16):
        a(f"v_mov_b32 v{64+k}, 0")
    for e in range(8):
        a(f"s_waitcnt vmcnt({7-e})")
        for k in range(4):
            X = 104 + 8*(e & 1) + 2*k
            a(f"v_lshlrev_b32 v{X}, 16, v{32+4*e+k}")
            a(f"v_and_b32 v{X+1}, 0xffff0000, v{32+4*e+k}")
            a(f"v_pk_add_f32 v[{64+2*k}:{65+2*k}], v[{64+2*k}:{65+2*k}], v[{X}:{X+1}]")
            a(f"v_pk_fma_f32 v[{72+2*k}:{73+2*k}], v[{X}:{X+1}], v[{X}:{X+1}], v[{72+2*k}:{73+2*k}]")
    a(f"s_branch {name}_ln_cont")
    a(f"{name}_ln_dma:")
    a("s_sub_u32 s40, s30, 8")
    a("v_and_b32 v17, 63, v0")
    for i in range(4):
        if i < 3:
            a(f"s_add_u32 s41, s40, {3*i}")
        else:
            a(f"s_add_u32 s41, s40, 9")
            a(f"s_min_u32 s41, s41, 10")
        a(f"s_lshl_b32 s{44+i}, s41, 10")
        a(f"s_lshl_b32 s41, s41, 6")
        a(f"v_add_u32 v18, s41, v17")
        a(f"v_mul_u32_u24 v19, 2979, v18")
        a(f"v_lshrrev_b32 v19, 16, v19")
        a(f"v_mul_u32_u24 v20, 22, v19")
        a(f"v_sub_u32 v20, v18, v20")
        a(f"v_mul_u32_u24 v19, 2752, v19")
        a(f"v_lshl_add_u32 v19, v20, 4, v19")
        a(f"v_add_u32 v{24+i}, s31, v19")
    for st in range(PF):
        for i in range(4):
            a(f"s_add_u32 s33, s{44+i}, {WST + (st % NWB)*WSZ}")
            a(f"s_mov_b32 m0, s33")
            a(f"s_mov_b32 s34, {st * 88064}")
            a(f"buffer_load_dwordx4 v{24+i}, s[12:15], s34 offen lds")
            a(f"s_add_u32 m0, s33, {UPOFF}")
            a(f"s_nop 0")
            a(f"buffer_load_dwordx4 v{24+i}, s[16:19], s34 offen lds")
    a(f"s_branch {name}_ln_skip1")
    a(f"{name}_ln_cont:")
    stamp(a, 1)
    for off in (0x201F, 0x401F):
        for k in range(16):
            a(f"ds_swizzle_b32 v{80+k}, v{64+k} offset:{hex(off)}")
        a("s_waitcnt lgkmcnt(0)")
        for k in range(16):
            a(f"v_add_f32 v{64+k}, v{64+k}, v{80+k}")
    a(f"""
    v_lshrrev_b32 v8, 5, v0
    v_lshlrev_b32 v8, 9, v8
    v_lshl_add_u32 v8, v4, 6, v8
    v_add_u32 v8, {SCR}, v8
    v_and_b32 v9, 31, v0
    v_cmp_gt_u32 vcc, 8, v9
    s_and_saveexec_b64 s[36:37], vcc
    ds_write_b128 v8, v[64:67] offset:0
    ds_write_b128 v8, v[68:71] offset:16
    ds_write_b128 v8, v[72:75] offset:32
    ds_write_b128 v8, v[76:79] offset:48
    s_mov_b64 exec, s[36:37]
    s_waitcnt lgkmcnt(0)
{name}_ln_skip1:
    s_barrier
    """)
    stamp(a, 8)
    a(f"""
    s_cmp_lg_u32 s30, 0
    s_cbranch_scc1 {name}_ln_skip2
    v_lshrrev_b32 v8, 3, v0
    v_lshlrev_b32 v8, 6, v8
    v_and_b32 v9, 7, v0
    v_lshl_add_u32 v8, v9, 2, v8
    v_add_u32 v8, {SCR}, v8
    """)
    for p in range(16):
        a(f"ds_read_b32 v{104+p}, v8 offset:{512*p}")
        a(f"ds_read_b32 v{120+p}, v8 offset:{512*p + 32}")
    a("s_waitcnt lgkmcnt(0)")
    for st in (8, 4, 2, 1):
        for k in range(st):
            a(f"v_add_f32 v{104+k}, v{104+k}, v{104+k+st}")
            a(f"v_add_f32 v{120+k}, v{120+k}, v{120+k+st}")
    a(f"""
    s_mov_b32 s36, 0x3b000000
    s_mov_b32 s37, 0x3727c5ac
    v_mul_f32 v104, s36, v104
    v_mul_f32 v120, s36, v120
    v_fma_f32 v120, -v104, v104, v120
    v_max_f32 v120, 0, v120
    v_cvt_pk_bf16_f32 v104, v104, v120
    v_and_b32 v120, 0xffff0000, v104
    v_lshlrev_b32 v104, 16, v104
    v_add_f32 v120, s37, v120
    v_cvt_pk_bf16_f32 v120, v120, v120
    v_lshlrev_b32 v120, 16, v120
    v_sqrt_f32 v120, v120
    s_nop 0
    v_cvt_pk_bf16_f32 v120, v120, v120
    v_lshlrev_b32 v120, 16, v120
    v_rcp_f32 v120, v120
    v_lshlrev_b32 v8, 2, v0
    v_add_u32 v8, {FIN}, v8
    ds_write_b32 v8, v104 offset:0
    ds_write_b32 v8, v120 offset:256
    s_waitcnt lgkmcnt(0)
{name}_ln_skip2:
    s_barrier
    """)
    stamp(a, 9)
    a(f"""
    s_cmp_ge_u32 s30, 8
    s_cbranch_scc1 {name}_ln_skip3
    v_lshlrev_b32 v8, 5, v4
    v_add_u32 v8, {FIN}, v8
    ds_read_b128 v[64:67], v8 offset:0
    ds_read_b128 v[68:71], v8 offset:16
    ds_read_b128 v[72:75], v8 offset:256
    ds_read_b128 v[76:79], v8 offset:272
    v_bfe_u32 v8, v5, 1, 1
    v_lshrrev_b32 v9, 2, v4
    v_xor_b32 v8, v8, v9
    v_lshlrev_b32 v8, 6, v8
    v_and_b32 v9, 3, v4
    v_lshl_add_u32 v8, v9, 4, v8
    v_lshl_add_u32 v7, v5, 7, v8
    s_waitcnt lgkmcnt(0)
{name}_ln_skip3:
    v_and_b32 v8, 63, v0              ; l
    v_bfe_u32 v9, v8, 4, 1            ; part / g%2
    v_lshrrev_b32 v10, 5, v8          ; kg
    v_bfe_u32 v11, v8, 2, 2           ; rr
    v_and_b32 v12, 3, v8              ; c4
    v_lshl_add_u32 v13, v10, 3, v11
    v_mul_u32_u24 v14, 352, v13
    v_mul_u32_u24 v15, {UPOFF}, v9
    v_add_u32 v14, v14, v15
    v_lshl_add_u32 v14, v12, 3, v14
    s_lshl_b32 s35, s30, 5
    v_add_u32 v4, s35, v14            ; vA
    v_add_u32 v4, {WST}, v4
    v_add_u32 v3, {2*WSZ}, v4
    v_lshlrev_b32 v14, 7, v13
    v_lshl_add_u32 v14, v9, 5, v14
    v_lshl_add_u32 v14, v12, 3, v14
    v_lshrrev_b32 v15, 1, v11         ; rr>>1
    v_lshl_add_u32 v5, v15, 6, v14    ; vB0
    v_xor_b32 v15, 1, v15
    v_lshl_add_u32 v6, v15, 6, v14    ; vB1
    s_lshr_b32 s39, s30, 2
    """)
    def normalize_to(a, st, half=None):
        e = st >> 1
        for hf in ((0, 1) if half is None else (half,)):
            lab = name + f"_nn{st}_{hf}"
            a(f"s_cmp_lg_u32 s39, {st & 1}")
            a(f"s_cbranch_scc1 {lab}")
            if hf == 0:
                ks = range(4)
                for k in ks: a(f"v_lshlrev_b32 v{8+2*k}, 16, v{32+4*e+k}")
                for k in ks: a(f"v_and_b32 v{9+2*k}, 0xffff0000, v{32+4*e+k}")
                for k in ks: a(f"v_pk_add_f32 v[{8+2*k}:{9+2*k}], v[{8+2*k}:{9+2*k}], v[{64+2*k}:{65+2*k}] neg_lo:[0,1] neg_hi:[0,1]")
                for k in ks: a(f"v_cvt_pk_bf16_f32 v{16+k}, v{8+2*k}, v{9+2*k}")
            else:
                ks = range(4)
                for k in ks: a(f"v_lshlrev_b32 v{8+2*k}, 16, v{16+k}")
                for k in ks: a(f"v_and_b32 v{9+2*k}, 0xffff0000, v{16+k}")
                for k in ks: a(f"v_pk_mul_f32 v[{8+2*k}:{9+2*k}], v[{8+2*k}:{9+2*k}], v[{72+2*k}:{73+2*k}]")
                for k in ks: a(f"v_cvt_pk_bf16_f32 v{20+k}, v{8+2*k}, v{9+2*k}")
            if hf == 1:
                a(f"ds_write_b128 v7, v[20:23] offset:{URING + 4096*(st % 3)}")
            a(f"{lab}:")
    a("s_cmp_ge_u32 s30, 8")
    a(f"s_cbranch_scc1 {name}_nskip")
    for e in range(8):
        T = 80 + 16 * (e & 1)
        ks = range(4)
        for k in ks: a(f"v_lshlrev_b32 v{T+2*k}, 16, v{32+4*e+k}")
        for k in ks: a(f"v_and_b32 v{T+1+2*k}, 0xffff0000, v{32+4*e+k}")
        for k in ks: a(f"v_pk_add_f32 v[{T+2*k}:{T+1+2*k}], v[{T+2*k}:{T+1+2*k}], v[{64+2*k}:{65+2*k}] neg_lo:[0,1] neg_hi:[0,1]")
        for k in ks: a(f"v_cvt_pk_bf16_f32 v{T+8+k}, v{T+2*k}, v{T+1+2*k}")
        for k in ks: a(f"v_lshlrev_b32 v{T+2*k}, 16, v{T+8+k}")
        for k in ks: a(f"v_and_b32 v{T+1+2*k}, 0xffff0000, v{T+8+k}")
        for k in ks: a(f"v_pk_mul_f32 v[{T+2*k}:{T+1+2*k}], v[{T+2*k}:{T+1+2*k}], v[{72+2*k}:{73+2*k}]")
        for k in ks: a(f"v_cvt_pk_bf16_f32 v{T+12+k}, v{T+2*k}, v{T+1+2*k}")
        a(f"ds_write_b128 v7, v[{T+12}:{T+15}] offset:{8192*e}")
    a(f"{name}_nskip:")
    a("s_waitcnt lgkmcnt(0)")
    stamp(a, 2)
    ACC = 128
    for r in range(32):
        a(f"v_mov_b32 v{ACC+r}, 0")
    def reads_to(a, st):
        buf = st % NWB
        areg = 4 if buf < 2 else 3
        base = (buf % 2) * WSZ
        ub = URING + 4096 * st
        F = 80 + 24 * (st & 1)
        for ks in range(2):
            for h in range(2):
                a(f"ds_read_b64_tr_b16 v[{F+4*ks+2*h}:{F+1+4*ks+2*h}], v{areg} offset:{base + ks*5632 + h*1408}")
            for tn in range(2):
                for h in range(2):
                    a(f"ds_read_b64_tr_b16 v[{F+8+8*tn+4*ks+2*h}:{F+9+8*tn+4*ks+2*h}], v{5+tn} offset:{ub + ks*2048 + h*512}")
    def reads(st): reads_to(a, st)
    def wait2(na, nb, lgk):
        l = " lgkmcnt(0)" if lgk else ""
        lab = a.newlabel(name + "_w")
        a("s_cmp_lt_u32 s30, 8")
        a(f"s_cbranch_scc1 {lab}")
        a(f"s_waitcnt vmcnt({min(nb,63)})")
        a(f"{lab}:")
        a(f"s_waitcnt vmcnt({min(na,63)}){l}") if na is not None else a("s_waitcnt lgkmcnt(0)")
    wait2(None, 8*(PF-1), True)
    a("s_barrier")
    reads(0)
    for st in range(16):
        need = st + 1
        if need < 16:
            last_issued = min(st + PF - 1, 15)
            if need < PF:
                na = None
                nb = 8 * (PF - 1 - need) + 2 * max(0, last_issued - (PF - 1))
            else:
                na = 2 * (last_issued - need)
                nb = na
            wait2(na, nb, True)
        else:
            a(f"s_waitcnt lgkmcnt(0)")
        a("s_barrier")
        if st in (0, 1, 8): stamp(a, 3 + (0, 1, 8).index(st))
        if False:
            lab = a.newlabel(name + "_pr")
            a("s_setprio 0")
            a(f"s_cmp_lg_u32 s39, {st & 1}")
            a(f"s_cbranch_scc1 {lab}")
            a("s_setprio 2")
            a(f"{lab}:")
        parts = [Asm(), Asm(), Asm(), Asm()]
        if st + 1 < 16 and 'noread' not in VAR:
            reads_to(parts[0], st + 1)
        if st + PF < 16 and 'nodma' not in VAR:
            dma_to(parts[0], st + PF)
        if False:
            normalize_to(parts[1], st + 2, 0)
            normalize_to(parts[2], st + 2, 1)
        F = 80 + 24 * (st & 1)
        mf = []
        for ks in range(2):
            for tn in range(2):
                mf.append(f"    v_mfma_f32_32x32x16_bf16 v[{ACC+16*tn}:{ACC+16*tn+15}], v[{F+4*ks}:{F+3+4*ks}], v[{F+8+8*tn+4*ks}:{F+11+8*tn+4*ks}], v[{ACC+16*tn}:{ACC+16*tn+15}]")
        for i in range(4):
            a.raw(mf[i])
            for ln in parts[i].lines:
                a.raw(ln)
    a("s_nop 15")
    stamp(a, 6)
    a(f"""
    s_mov_b32 s36, 0xbfb8aa3b         ; -log2e
    v_and_b32 v8, 31, v0
    v_bfe_u32 v9, v0, 5, 1
    s_lshl_b32 s35, s29, 6
    v_add_u32 v8, s35, v8             ; t
    v_mul_u32_u24 v8, {H_PITCH}, v8
    v_lshl_add_u32 v8, v9, 3, v8
    s_lshl_b32 s35, s30, 5
    s_add_u32 s35, s35, s31
    v_add_u32 v8, s35, v8             ; t*pitch + f0*2 + 2*(16w + 4*(l/32))
    s_cmp_eq_u32 s28, 7
    s_cselect_b32 s37, 1, 0
    s_cmp_ge_u32 s30, 9
    s_cselect_b32 s38, 1, 0
    s_and_b32 s37, s37, s38
    """)
    for tn in range(2):
        for jq in range(2):
            O = 16 + 4*tn + 2*jq
            for jj in range(0, 4, 2):
                g0 = ACC + 16*tn + 4*jq + jj
                u0 = g0 + 8
                a(f"v_cvt_pk_bf16_f32 v10, v{g0}, v{g0+1}")
                a(f"v_cvt_pk_bf16_f32 v11, v{u0}, v{u0+1}")
                a(f"v_lshlrev_b32 v12, 16, v10")
                a(f"v_and_b32 v13, 0xffff0000, v10")
                a(f"v_mul_f32 v14, s36, v12")
                a(f"v_mul_f32 v15, s36, v13")
                a(f"v_exp_f32 v14, v14")
                a(f"v_exp_f32 v15, v15")
                a(f"v_lshlrev_b32 v{g0}, 16, v11")
                a(f"v_add_f32 v14, 1.0, v14")
                a(f"v_add_f32 v15, 1.0, v15")
                a(f"v_rcp_f32 v14, v14")
                a(f"v_rcp_f32 v15, v15")
                a(f"v_and_b32 v{g0+1}, 0xffff0000, v11")
                a(f"v_pk_mul_f32 v[12:13], v[12:13], v[14:15]")
                a(f"v_cvt_pk_bf16_f32 v10, v12, v13")
                a(f"v_lshlrev_b32 v12, 16, v10")
                a(f"v_and_b32 v13, 0xffff0000, v10")
                a(f"v_pk_mul_f32 v[12:13], v[12:13], v[{g0}:{g0+1}]")
                a(f"v_cvt_pk_bf16_f32 v{O+jj//2}, v12, v13")
            a("s_cmp_eq_u32 s37, 0")
            lab = a.newlabel(name + "_nz")
            a(f"s_cbranch_scc1 {lab}")
            a(f"v_mov_b32 v{O}, 0")
            a(f"v_mov_b32 v{O+1}, 0")
            a(f"{lab}:")
            if tn == 1 and jq == 0:
                a(f"v_add_u32 v8, {32*H_PITCH}, v8")
            a(f"buffer_store_dwordx2 v[{O}:{O+1}], v8, s[24:27], 0 offen offset:{jq*16}")
    stamp(a, 7)
    a(f"{E}:")
    a("s_endpgm")
    kernel_desc(a, name, 160)
```
